```python
import torch

def _softmax(x, axis=-1):
    return torch.softmax(x, dim=axis)
def _gelu(x):
    return torch.nn.functional.gelu(x, approximate="tanh")
def _silu(x):
    return torch.nn.functional.silu(x)
def _sigmoid(x):
    return torch.sigmoid(x)
def _layernorm(x, axis=-1, eps=1e-5):
    m = x.mean(dim=axis, keepdim=True)
    v = x.var(dim=axis, keepdim=True, unbiased=False)
    return (x - m) / torch.sqrt(v + eps)
def _scatter_add(tgt, idx, src, axis=0):
    return tgt.clone().index_add_(axis, idx, src)
def _segment_sum(src, seg, n):
    out = torch.zeros((n,) + src.shape[1:], dtype=src.dtype)
    return out.index_add_(0, seg, src)
def _pad(x, pw):
    flat = tuple(v for pair in reversed(pw) for v in pair)
    return torch.nn.functional.pad(x, flat)

kernel_name = 'sequential_preLN__sliding_block_cached__dense_activation_silu__decode'

def setup_inputs():

    _w = (lambda a: (lambda t: t.to(torch.bfloat16) if t.is_floating_point() else t)(torch.as_tensor(a)))
    def _A_setup():
        B, Sq, D = 1, 1, 512
        Hq, Hkv, Sk, Dh = 32, 8, 32768, 128
        assert Hq % Hkv == 0, (Hq, Hkv)
        return {
            "x": _w((lambda *s: torch.randn(*s, dtype=torch.bfloat16) * 0.05)(B, Sq, D)),
            "k_cache": _w((lambda *s: torch.randn(*s, dtype=torch.bfloat16) * 3.2)(B, Hkv, Sk, Dh)),
            "v_cache": _w((lambda *s: torch.randn(*s, dtype=torch.bfloat16) * 0.8)(B, Hkv, Sk, Dh)),
            "wq": _w((lambda *s: torch.randn(*s, dtype=torch.bfloat16) * 3.2)(D, Hq * Dh) * (D ** -0.5)),
            "wo": _w((lambda *s: torch.randn(*s, dtype=torch.bfloat16) * 0.8)(Hq * Dh, D) * ((Hq * Dh) ** -0.5)),
        }
    _A_in = _A_setup()

    def _B_setup():
        B, S, D, F = 1, 1, 512, 1792
        return {
            "x": _w((lambda *s: torch.randn(*s, dtype=torch.bfloat16) * 0.05)(B, S, D)),
            "w1": _w((lambda *s: torch.randn(*s, dtype=torch.bfloat16) * 3.2)(D, F) * (D ** -0.5)),
            "w2": _w((lambda *s: torch.randn(*s, dtype=torch.bfloat16) * 0.4)(F, D) * (F ** -0.5)),
        }
    _B_in = _B_setup()

    return {
        "A_x": _A_in["x"],
        "A_k_cache": _A_in["k_cache"],
        "A_v_cache": _A_in["v_cache"],
        "A_wq": _A_in["wq"],
        "A_wo": _A_in["wo"],
        "B_x": _B_in["x"],
        "B_w1": _B_in["w1"],
        "B_w2": _B_in["w2"],
    }

def reference(A_x, A_k_cache, A_v_cache, A_wq, A_wo, B_x, B_w1, B_w2):
    def _A_ref(x, k_cache, v_cache, wq, wo):
        B, Sq, D = x.shape
        Hq, Dh = 32, 128
        Hkv, Sk = k_cache.shape[1], k_cache.shape[2]
        W = min(4096, max(256, Sk // 4))
        rep = Hq // Hkv
        q = (lambda x, *d: x.permute(*d))((x @ wq).reshape(B, Sq, Hq, Dh), 0, 2, 1, 3)
        k = (lambda x, n, axis: torch.repeat_interleave(x, n, dim=axis))(k_cache[:, :, Sk - W:, :], rep, axis=1)
        v = (lambda x, n, axis: torch.repeat_interleave(x, n, dim=axis))(v_cache[:, :, Sk - W:, :], rep, axis=1)
        scores = torch.einsum("bhqd,bhkd->bhqk", q, k) * (Dh ** -0.5)
        p = _softmax(scores, axis=-1)
        o = torch.einsum("bhqk,bhkd->bhqd", p, v)
        return (lambda x, *d: x.permute(*d))(o, 0, 2, 1, 3).reshape(B, Sq, Hq * Dh) @ wo

    def _B_ref(x, w1, w2):
        h = torch.einsum("bsd,df->bsf", x, w1)
        h = _silu(h)
        out = torch.einsum("bsf,fd->bsd", h, w2)
        return out

    x = A_x
    h = x + _A_ref(_layernorm(x, axis=-1), A_k_cache, A_v_cache, A_wq, A_wo)
    h2 = h + _B_ref(_layernorm(h, axis=-1), B_w1, B_w2)
    return h2
```

```python
NAME = 'sequential_preLN__sliding_block_cached__dense_activation_silu__decode'

HEADER = """; Kernarg layout for this problem (88 bytes, ptrs only, base s[0:1]):
"""

class Asm:
    def __init__(self):
        self.lines = []
        self.nlab = 0
    def __call__(self, s=''):
        for l in s.split('\n'):
            self.lines.append('    ' + l.strip() if l.strip() and not l.strip().endswith(':') else l.strip())
    def lab(self, base='L'):
        self.nlab += 1
        return f'{base}_{self.nlab}'
    def text(self):
        return '\n'.join(self.lines) + '\n'

def wrap(body, grid, block, lds, vgpr, sgpr=102, accum=None, kname=NAME + '_kernel'):
    if accum is None:
        accum = (vgpr + 3) // 4 * 4
    s = HEADER
    s += f'; @launch grid=({grid},1,1) block=({block},1,1) lds={lds}\n'
    s += '.amdgcn_target "amdgcn-amd-amdhsa--gfx950"\n.text\n'
    s += f'.globl {kname}\n.p2align 8\n.type {kname},@function\n{kname}:\n'
    s += body
    s += '.section .rodata,"a"\n.p2align 6\n'
    s += f'.amdhsa_kernel {kname}\n'
    s += f'  .amdhsa_next_free_vgpr {vgpr}\n  .amdhsa_next_free_sgpr {sgpr}\n  .amdhsa_accum_offset {accum}\n'
    s += '  .amdhsa_group_segment_fixed_size 0\n  .amdhsa_kernarg_size 88\n  .amdhsa_user_sgpr_count 2\n'
    s += '  .amdhsa_user_sgpr_kernarg_segment_ptr 1\n  .amdhsa_system_sgpr_workgroup_id_x 1\n'
    s += '  .amdhsa_float_denorm_mode_32 3\n'
    s += '.end_amdhsa_kernel\n'
    return s
```

```python
import sys
from asmgen import Asm, wrap, NAME

WS_EPOCH = 0
WS_Q     = 4096
WS_OA    = 65536
WS_OB    = WS_OA + 256 * 2048
WS_H3    = WS_OB + 256 * 2048
WS_H4    = WS_H3 + 64 * 2048
WS_END   = WS_H4 + 112 * 2048
WS_DBG   = 16 << 20
STAMP_OFF = 128 << 20

L_R0  = 0
L_V   = 32768
L_LN  = 65536
L_QP  = L_LN + 1024
L_Q   = L_QP + 512
L_M   = L_Q + 1024
L_L   = L_M + 128
L_P   = L_L + 128
L_FLG = L_P + 1024
L_W   = L_FLG + 64
L_OP  = L_W + 1024
L_ST  = L_OP + 1024
L_CS  = L_ST + 64
L_END = L_CS + 512
LDS_BYTES = (L_END + 255) // 256 * 256

LOG2E = 0x3fb8aa3b
SCALE = 0x3db504f3

class Gen:
    def __init__(self, diag=False, dump=False, opts=None):
        self.a = Asm()
        self.diag = diag
        self.dump = dump
        self.o = dict(pol='nt', polwq='nt', polw='nt', useA=False, spin=40000)
        if opts: self.o.update(opts)
        self.nstamp = 0
    def __call__(self, s): self.a(s)
    def nop(self, n):
        if n > 0: self.a(f's_nop {n-1}')
    def stamp(self, k):
        if self.diag:
            self.a(f's_memrealtime s[{64+2*k}:{65+2*k}]')
    def stamp_init(self):
        if self.diag:
            for k in range(16):
                self.a(f's_mov_b64 s[{64+2*k}:{65+2*k}], 0')
    def stamp_flush(self, lab):
        if not self.diag: return
        a = self.a
        a('s_waitcnt lgkmcnt(0)')
        a('s_mov_b64 exec, 1')
        a('s_mul_i32 s44, s2, 9')
        a('s_add_u32 s44, s44, s3')
        a('s_lshl_b32 s44, s44, 7')
        a(f's_add_u32 s44, s44, {STAMP_OFF}')
        a('v_mov_b32 v1, 0')
        for k in range(16):
            a(f'v_mov_b32 v2, s{64+2*k}')
            a(f'v_mov_b32 v3, s{65+2*k}')
            a(f'buffer_store_dwordx2 v[2:3], v1, s[28:31], s44 offen offset:{8*k}')
            a('s_nop 1')
        a('s_waitcnt vmcnt(0)')

    def allreduce64(self, v, tmp, op='add'):
        a = self.a
        ins = 'v_add_f32' if op == 'add' else 'v_max_f32'
        for r in (8, 4, 2, 1):
            self.nop(2)
            a(f'{ins}_dpp {v}, {v}, {v} row_ror:{r} row_mask:0xf bank_mask:0xf')
        self.rows_reduce(v, tmp, op)
    def rows_reduce(self, v, tmp, op='add'):
        a = self.a
        ins = 'v_add_f32' if op == 'add' else 'v_max_f32'
        a(f'v_mov_b32 {tmp}, {v}')
        self.nop(2)
        a(f'v_permlane16_swap_b32 {v}, {tmp}')
        self.nop(1)
        a(f'{ins} {v}, {v}, {tmp}')
        a(f'v_mov_b32 {tmp}, {v}')
        self.nop(2)
        a(f'v_permlane32_swap_b32 {v}, {tmp}')
        self.nop(1)
        a(f'{ins} {v}, {v}, {tmp}')

    def poll_head(self, lab):
        a = self.a
        a(f's_mov_b32 s52, {self.o["spin"]}')
        a(f'{lab}:')
    def poll_tail(self, lab):
        a = self.a
        a(f's_cbranch_vccz {lab}_ok')
        a('s_sub_u32 s52, s52, 1')
        a(f's_cbranch_scc0 {lab}')
        a(f'{lab}_ok:')

    def dbg_store(self, vreg, ndw, off_expr_sgpr_setup, voff, cond=None):
        pass

    def build(self):
        a = self.a; o = self.o
        pol, polwq, polw = o['pol'], o['polwq'], o['polw']
        self.stamp_init_pre = None
        if self.diag: a('s_memrealtime s[64:65]')
        a('''
        s_cmp_ge_u32 s2, 256
        s_cbranch_scc1 L_exit
        s_load_dwordx2 s[16:17], s[0:1], 24
        s_load_dwordx2 s[32:33], s[0:1], 0
        s_load_dwordx2 s[8:9], s[0:1], 8
        s_load_dwordx2 s[12:13], s[0:1], 16
        s_load_dwordx2 s[28:29], s[0:1], 80
        v_lshrrev_b32 v1, 6, v0
        v_and_b32 v0, 63, v0
        s_and_b32 s4, s2, 7
        s_lshr_b32 s5, s2, 3
        v_readfirstlane_b32 s3, v1
        s_mov_b32 s18, 4194304
        s_mov_b32 s19, 0x20000
        s_mov_b32 s10, 67108864
        s_mov_b32 s11, 0x20000
        s_mov_b32 s14, 67108864
        s_mov_b32 s15, 0x20000
        s_mov_b32 s30, 0x10000000
        s_mov_b32 s31, 0x20000
        ''')
        if self.diag:
            for k in range(1, 16): a(f's_mov_b64 s[{64+2*k}:{65+2*k}], 0')
        a('s_cmp_eq_u32 s3, 8')
        a('s_cbranch_scc1 L_comm')
        a(f'''
        v_lshrrev_b32 v1, 1, v0
        v_lshlrev_b32 v1, 13, v1
        v_and_b32 v2, 1, v0
        v_lshl_or_b32 v1, v2, 4, v1
        v_lshlrev_b32 v2, 4, v0                ; v2 = lane*16
        v_and_b32 v3, 15, v0                   ; v3 = lane&15
        v_lshrrev_b32 v4, 4, v0                ; v4 = lane>>4
        v_lshlrev_b32 v5, 8, v3
        v_lshl_or_b32 v5, v4, 4, v5            ; v5 = K voffset
        v_lshlrev_b32 v6, 1, v4
        v_xor_b32 v6, v6, v3
        v_lshlrev_b32 v6, 4, v6
        v_lshl_or_b32 v6, v4, 8, v6
        v_xor_b32 v7, 128, v6
        s_lshl_b32 s37, s3, 19
        s_lshl_b32 s7, s4, 10
        s_add_u32 s37, s37, s7
        s_lshl_b32 s7, s5, 5
        s_add_u32 s37, s37, s7
        s_add_u32 s38, s37, {262144-1024}      ; wq soffset 1 (imm offset 1024 added)
        s_lshl_b32 s36, s4, 23
        s_lshl_b32 s7, s5, 15
        s_add_u32 s36, s36, s7
        s_lshl_b32 s7, s3, 12
        s_add_u32 s36, s36, s7
        s_add_u32 s36, s36, {28672*256}        ; K/V soffset
        s_lshl_b32 s39, s3, 12                 ; w*4096
        s_mov_b32 m0, s39                      ; L_R0 + w*4096
        s_waitcnt lgkmcnt(0)
        global_load_dwordx4 v[8:11], v2, s[32:33]
        buffer_load_dwordx4 v1, s[16:19], s37 offen {polwq} lds
        buffer_load_dwordx4 v1, s[16:19], s38 offen offset:1024 {polwq} lds
        buffer_load_dwordx4 v[16:19], v5, s[8:11], s36 offen {pol}
        ''')
        self.stamp(1)
        a('''
        s_load_dwordx2 s[34:35], s[0:1], 64
        s_load_dword s43, s[28:29], 0x0
        s_load_dwordx2 s[24:25], s[0:1], 56
        s_load_dwordx2 s[20:21], s[0:1], 32
        s_load_dwordx2 s[60:61], s[0:1], 48
        s_mov_b32 s48, 0x000f000f
        s_mov_b32 s49, 0x000f000f
        s_mov_b32 s23, 0x20000
        s_mov_b32 s26, 1835008
        s_mov_b32 s27, 0x20000
        ''')
        a('s_waitcnt vmcnt(3)')
        self.stamp(2)
        for k in range(4):
            a(f'v_lshlrev_b32 v{20+2*k}, 16, v{8+k}')
            a(f'v_and_b32 v{21+2*k}, 0xffff0000, v{8+k}')
        a('''
        v_add_f32 v28, v20, v21
        v_add_f32 v29, v22, v23
        v_add_f32 v30, v24, v25
        v_add_f32 v31, v26, v27
        v_add_f32 v28, v28, v29
        v_add_f32 v30, v30, v31
        v_add_f32 v28, v28, v30
        ''')
        self.allreduce64('v28', 'v29')
        a('v_mul_f32 v28, 0x3b000000, v28        ; mean')
        for k in range(8):
            a(f'v_sub_f32 v{32+k}, v{20+k}, v28')
        a('v_mul_f32 v29, v32, v32')
        for k in range(1, 8):
            a(f'v_fmac_f32 v29, v{32+k}, v{32+k}')
        self.allreduce64('v29', 'v30')
        a('''
        v_mul_f32 v29, 0x3b000000, v29        ; var
        v_cvt_pk_bf16_f32 v30, v28, v29
        v_lshlrev_b32 v28, 16, v30
        v_and_b32 v29, 0xffff0000, v30
        v_add_f32 v29, 0x3727c5ac, v29        ; + 1e-5
        v_cvt_pk_bf16_f32 v29, v29, v29
        v_and_b32 v29, 0xffff0000, v29
        v_sqrt_f32 v29, v29
        s_nop 0
        v_cvt_pk_bf16_f32 v29, v29, v29
        v_and_b32 v29, 0xffff0000, v29
        v_rcp_f32 v30, v29
        ''')
        for k in range(8):
            a(f'v_sub_f32 v{32+k}, v{20+k}, v28')
        for k in range(4):
            a(f'v_cvt_pk_bf16_f32 v{40+k}, v{32+2*k}, v{33+2*k}')
        for k in range(4):
            a(f'v_lshlrev_b32 v{32+2*k}, 16, v{40+k}')
            a(f'v_and_b32 v{33+2*k}, 0xffff0000, v{40+k}')
        for k in range(8):
            a(f'v_mul_f32 v{20+k}, v{32+k}, v30')
        for k in range(8):
            a(f'v_fma_f32 v{40+k}, -v{20+k}, v29, v{32+k}')
        for k in range(8):
            a(f'v_fmac_f32 v{20+k}, v{40+k}, v30')
        for k in range(4):
            a(f'v_cvt_pk_bf16_f32 v{40+k}, v{20+2*k}, v{21+2*k}')
        a(f'''
        v_lshrrev_b32 v28, 3, v0
        v_and_b32 v29, 7, v0
        v_lshlrev_b32 v29, 4, v29
        s_lshl_b32 s7, s3, 7
        s_add_u32 s7, s7, {L_LN}
        v_add_u32 v29, s7, v29
        v_cmp_eq_u32 vcc, s3, v28
        s_and_saveexec_b64 s[44:45], vcc
        ds_write_b128 v29, v[40:43]
        s_mov_b64 exec, s[44:45]
        v_lshlrev_b32 v28, 3, v4
        v_add_u32 v28, s7, v28
        s_waitcnt lgkmcnt(0)
        s_mov_b32 s22, 4194304
        s_cmp_lt_u32 s5, 16
        s_cselect_b32 s20, s20, s60
        s_cselect_b32 s21, s21, s61
        s_cselect_b32 s22, s22, s26
        ds_read2_b64 v[20:23], v28 offset0:0 offset1:4
        ds_read2_b64 v[24:27], v28 offset0:8 offset1:12
        v_lshlrev_b32 v12, 3, v0
        v_add_u32 v12, s39, v12                ; L_R0 + w*4096 + lane*8
        ''')
        a('s_waitcnt vmcnt(1)')
        self.stamp(3)
        a(f'''
        buffer_load_dwordx4 v[48:51], v5, s[8:11], s36 offen offset:64 {pol}
        buffer_load_dwordx4 v[52:55], v5, s[8:11], s36 offen offset:128 {pol}
        ds_read_b64_tr_b16 v[32:33], v12
        ds_read_b64_tr_b16 v[34:35], v12 offset:512
        ds_read_b64_tr_b16 v[36:37], v12 offset:1024
        ds_read_b64_tr_b16 v[38:39], v12 offset:1536
        s_waitcnt lgkmcnt(0)
        v_mfma_f32_16x16x32_bf16 v[40:43], v[20:23], v[32:35], 0
        v_mfma_f32_16x16x32_bf16 v[40:43], v[24:27], v[36:39], v[40:43]
        v_lshlrev_b32 v13, 2, v0
        s_lshl_b32 s7, s3, 6
        s_add_u32 s7, s7, {L_QP}
        v_add_u32 v13, s7, v13
        s_mov_b64 exec, 0xffff
        s_nop 4
        ds_write_b32 v13, v40
        s_mov_b64 exec, -1
        s_waitcnt lgkmcnt(0)
        s_barrier                              ; B1
        ''')
        self.stamp(4)
        a(f'''
        s_add_u32 s7, s39, {L_V}
        s_mov_b32 m0, s7
        s_waitcnt vmcnt(2)
        buffer_load_dwordx4 v[56:59], v5, s[8:11], s36 offen offset:192 {pol}
        s_waitcnt vmcnt(2)
        buffer_load_dwordx4 v6, s[12:15], s36 offen {pol} lds
        s_waitcnt vmcnt(2)
        buffer_load_dwordx4 v7, s[12:15], s36 offen offset:1024 {pol} lds
        s_waitcnt vmcnt(2)
        buffer_load_dwordx4 v6, s[12:15], s36 offen offset:2048 {pol} lds
        s_waitcnt vmcnt(2)
        buffer_load_dwordx4 v7, s[12:15], s36 offen offset:3072 {pol} lds
        ''')
        self.stamp(5)
        a('''
        s_waitcnt lgkmcnt(0)
        s_mul_i32 s42, s43, 0x9e3779b1
        s_add_u32 s42, s42, 0x7f4a7c15
        ''')
        a(f'''
        v_and_b32 v8, 3, v0                    ; head = j&3
        v_lshlrev_b32 v9, 8, v8
        v_lshl_or_b32 v9, v4, 4, v9
        v_add_u32 v9, {L_Q}, v9                ; q frag addr
        v_lshlrev_b32 v10, 5, v8
        v_add_u32 v10, {L_M}, v10              ; L_M + head*32
        s_lshl_b32 s7, s3, 2
        v_add_u32 v11, s7, v10                 ; L_M + head*32 + w*4
        s_barrier                              ; B2 : q ready
        ''')
        self.stamp(6)
        a(f'''
        s_mov_b32 m0, s39
        s_cmp_lt_u32 s5, 16
        s_cbranch_scc0 L_rl_notwo
        v_lshrrev_b32 v14, 2, v0
        v_lshlrev_b32 v14, 10, v14
        v_and_b32 v15, 3, v0
        v_lshl_or_b32 v14, v15, 4, v14
        s_lshl_b32 s44, s4, 19
        s_lshl_b32 s45, s3, 16
        s_add_u32 s44, s44, s45
        s_lshl_b32 s45, s5, 6
        s_add_u32 s44, s44, s45
        buffer_load_dwordx4 v14, s[20:23], s44 offen {polw} lds
        s_add_u32 s44, s44, {16384-1024}
        buffer_load_dwordx4 v14, s[20:23], s44 offen offset:1024 {polw} lds
        s_add_u32 s44, s44, {16384-1024}
        buffer_load_dwordx4 v14, s[20:23], s44 offen offset:2048 {polw} lds
        s_add_u32 s44, s44, {16384-1024}
        buffer_load_dwordx4 v14, s[20:23], s44 offen offset:3072 {polw} lds
        s_mov_b32 s46, 4
        s_branch L_rl_done
        L_rl_notwo:
        s_mov_b32 s46, 0
        L_rl_done:
        ''')
        a(f'''
        ds_read_b128 v[20:23], v9
        ds_read_b128 v[24:27], v9 offset:64
        ds_read_b128 v[28:31], v9 offset:128
        ds_read_b128 v[32:35], v9 offset:192
        s_waitcnt lgkmcnt(0)
        v_mfma_f32_16x16x32_bf16 v[40:43], v[16:19], v[20:23], 0
        v_mfma_f32_16x16x32_bf16 v[40:43], v[48:51], v[24:27], v[40:43]
        v_mfma_f32_16x16x32_bf16 v[40:43], v[52:55], v[28:31], v[40:43]
        v_mfma_f32_16x16x32_bf16 v[40:43], v[56:59], v[32:35], v[40:43]
        s_mov_b32 s7, {SCALE}
        s_nop 6
        v_cvt_pk_bf16_f32 v44, v40, v41
        v_cvt_pk_bf16_f32 v45, v42, v43
        v_lshlrev_b32 v40, 16, v44
        v_and_b32 v41, 0xffff0000, v44
        v_lshlrev_b32 v42, 16, v45
        v_and_b32 v43, 0xffff0000, v45
        v_mul_f32 v40, s7, v40
        v_mul_f32 v41, s7, v41
        v_mul_f32 v42, s7, v42
        v_mul_f32 v43, s7, v43
        v_cvt_pk_bf16_f32 v44, v40, v41
        v_cvt_pk_bf16_f32 v45, v42, v43
        v_lshlrev_b32 v40, 16, v44
        v_and_b32 v41, 0xffff0000, v44
        v_lshlrev_b32 v42, 16, v45
        v_and_b32 v43, 0xffff0000, v45
        v_max_f32 v44, v40, v41
        v_max3_f32 v44, v42, v43, v44
        ''')
        self.rows_reduce('v44', 'v45', 'max')
        a(f'''
        s_mov_b64 exec, 0xf
        ds_write_b32 v11, v44
        s_mov_b64 exec, -1
        s_waitcnt lgkmcnt(0)
        s_barrier
        ds_read_b128 v[20:23], v10
        ds_read_b128 v[24:27], v10 offset:16
        v_lshrrev_b32 v28, 1, v0               ; P write address pieces
        s_lshr_b32 s7, s3, 1
        s_lshl_b32 s7, s7, 6                   ; u*64 bytes
        s_and_b32 s44, s3, 1
        s_lshl_b32 s44, s44, 3                 ; (w&1)*8 bytes
        s_add_u32 s7, s7, s44
        s_add_u32 s7, s7, {L_P}
        v_lshlrev_b32 v28, 8, v8
        v_lshl_or_b32 v28, v4, 4, v28          ; head*256 + q*16
        v_add_u32 v28, s7, v28
        s_mov_b32 s7, {LOG2E}
        s_waitcnt lgkmcnt(0)
        v_max3_f32 v20, v20, v21, v22
        v_max3_f32 v24, v24, v25, v26
        v_max3_f32 v20, v20, v23, v27
        v_max_f32 v20, v20, v24                ; M
        v_sub_f32 v40, v40, v20
        v_sub_f32 v41, v41, v20
        v_sub_f32 v42, v42, v20
        v_sub_f32 v43, v43, v20
        v_mul_f32 v40, s7, v40
        v_mul_f32 v41, s7, v41
        v_mul_f32 v42, s7, v42
        v_mul_f32 v43, s7, v43
        v_exp_f32 v40, v40
        v_exp_f32 v41, v41
        v_exp_f32 v42, v42
        v_exp_f32 v43, v43
        s_nop 0
        v_cvt_pk_bf16_f32 v46, v40, v41
        v_cvt_pk_bf16_f32 v47, v42, v43
        v_add_f32 v44, v40, v41
        v_add_f32 v45, v42, v43
        v_add_f32 v44, v44, v45
        s_mov_b64 exec, s[48:49]
        ds_write_b64 v28, v[46:47]
        s_mov_b64 exec, -1
        ''')
        self.rows_reduce('v44', 'v45', 'add')
        a(f'''
        s_mov_b64 exec, 0xf
        ds_write_b32 v11, v44 offset:{L_L-L_M}
        s_mov_b64 exec, -1
        ; V tr-read base address
        v_bfe_u32 v28, v0, 2, 4
        v_and_b32 v29, 7, v28
        v_lshlrev_b32 v29, 1, v29              ; 2*(key&7)
        v_bfe_u32 v30, v0, 1, 1                ; c/2
        s_lshl_b32 s7, s3, 1
        v_add_u32 v30, s7, v30                 ; 2w + c/2
        v_xor_b32 v30, v30, v29
        v_lshlrev_b32 v30, 4, v30
        v_lshl_or_b32 v30, v28, 8, v30
        v_and_b32 v29, 1, v0
        v_lshl_or_b32 v30, v29, 3, v30
        v_add_u32 v30, {L_V}, v30
        v_lshlrev_b32 v31, 8, v8
        v_lshl_or_b32 v31, v4, 4, v31
        v_add_u32 v31, {L_P}, v31
        s_cmp_eq_u32 s46, 0
        s_cbranch_scc1 L_w0
        s_waitcnt vmcnt(4)
        s_branch L_w1
        L_w0:
        s_waitcnt vmcnt(0)
        L_w1:
        s_waitcnt lgkmcnt(0)
        ''')
        self.stamp(7)
        a('s_barrier                              ; B4 : P, l, V ready')
        self.stamp(8)
        for u in range(4):
            a(f'ds_read_b128 v[{32+4*u}:{35+4*u}], v31 offset:{u*64}')
            a(f'ds_read_b64_tr_b16 v[{48+4*u}:{49+4*u}], v30 offset:{u*8192}')
            a(f'ds_read_b64_tr_b16 v[{50+4*u}:{51+4*u}], v30 offset:{u*8192+4096}')
        for u in range(4):
            a(f's_waitcnt lgkmcnt({3*(3-u)})') if not self.diag else (a('s_waitcnt lgkmcnt(0)') if u == 0 else None)
            c = '0' if u == 0 else 'v[20:23]'
            a(f'v_mfma_f32_16x16x32_bf16 v[20:23], v[{32+4*u}:{35+4*u}], v[{48+4*u}:{51+4*u}], {c}')
        a(f'''
        v_cmp_eq_u32 s[44:45], 1, v4
        v_cmp_eq_u32 s[46:47], 2, v4
        v_cmp_eq_u32 vcc, 3, v4
        v_lshlrev_b32 v24, 8, v4               ; head*256
        v_lshlrev_b32 v25, 1, v3
        v_add_u32 v24, v24, v25
        s_lshl_b32 s7, s3, 5
        s_lshl_b32 s50, s2, 0
        s_lshl_b32 s50, s4, 5
        s_add_u32 s50, s50, s5
        s_lshl_b32 s50, s50, 11                ; (g*32+s)*2048
        s_add_u32 s51, s50, {WS_OB}
        s_add_u32 s7, s7, s51
        v_cndmask_b32 v20, v20, v21, s[44:45]
        v_cndmask_b32 v20, v20, v22, s[46:47]
        v_cndmask_b32 v20, v20, v23, vcc
        s_nop 1
        v_mov_b32_dpp v21, v20 quad_perm:[1,0,3,2] row_mask:0xf bank_mask:0xf
        s_nop 0
        v_cvt_pk_bf16_f32 v20, v20, v21
        v_min_u32 v20, -2, v20
        s_mov_b32 exec_lo, 0x55555555
        s_mov_b32 exec_hi, 0x55555555
        buffer_store_dword v20, v24, s[28:31], s7 offen sc1
        s_mov_b64 exec, -1
        ''')
        self.stamp(9)
        a('''
        s_cmp_lt_u32 s5, 16
        s_cbranch_scc1 L_wo
        s_cmp_lt_u32 s5, 30
        s_cbranch_scc1 L_mlp
        s_branch L_fin
        ''')
        self.role_wo()
        self.role_mlp()
        self.role_fin()
        self.comm()
        a('L_exit:')
        a('s_endpgm')
        return wrap(a.text(), 256, 576, LDS_BYTES, 128, sgpr=100)

    def tag_insert(self, regs, tmp_s):
        a = self.a
        for k, r in enumerate(regs):
            a(f's_bfe_u32 {tmp_s}, s42, {(8 << 16) | (8 * k)}')
            a(f'v_and_b32 {r}, 0xffffff00, {r}')
            a(f'v_or_b32 {r}, {tmp_s}, {r}')
    def tag_check(self, granules, t0, t1, first=True):
        a = self.a
        for i, b in enumerate(granules):
            a(f'v_perm_b32 {t0}, v{b+1}, v{b}, s53')
            a(f'v_perm_b32 {t1}, v{b+3}, v{b+2}, s54')
            a(f'v_or_b32 {t0}, {t0}, {t1}')
            if i == 0:
                a(f'v_cmp_ne_u32 vcc, s42, {t0}')
            else:
                a(f'v_cmp_ne_u32 s[44:45], s42, {t0}')
                a('s_nop 0')
                a('s_or_b64 vcc, vcc, s[44:45]')
    def tag_consts(self):
        self.a('s_mov_b32 s53, 0x0c0c0400')
        self.a('s_mov_b32 s54, 0x04000c0c')

    def role_wo(self):
        a = self.a
        a('L_wo:')
        a(f'''
        v_and_b32 v8, 31, v0
        v_lshrrev_b32 v9, 5, v0
        v_lshlrev_b32 v10, 11, v8              ; c*2048
        v_lshl_or_b32 v11, v9, 4, v10          ; + kh*16
        s_lshl_b32 s7, s4, 16                  ; g*32*2048
        s_add_u32 s7, s7, {WS_OB}
        s_lshr_b32 s44, s3, 1
        s_lshl_b32 s45, s44, 8                 ; h*256
        s_and_b32 s46, s3, 1
        s_lshl_b32 s46, s46, 7                 ; dhalf*128
        s_add_u32 s45, s45, s46
        s_add_u32 s55, s7, s45
        s_lshl_b32 s44, s44, 3                 ; h*8
        s_add_u32 s56, s7, s44
        s_add_u32 s56, s56, 1024
        v_bfe_u32 v12, v0, 4, 1                ; colhalf
        v_bfe_u32 v13, v0, 2, 2                ; r
        v_and_b32 v14, 3, v0                   ; c
        v_lshlrev_b32 v15, 9, v9
        v_lshl_or_b32 v15, v13, 6, v15         ; + r*64
        v_lshl_or_b32 v15, v12, 5, v15         ; + colhalf*32
        v_lshl_or_b32 v15, v14, 3, v15         ; + c*8
        v_add_u32 v15, s39, v15
        s_waitcnt vmcnt(0)
        ''')
        for st in range(4):
            a(f'ds_read_b64_tr_b16 v[{48+4*st}:{49+4*st}], v15 offset:{st*1024}')
            a(f'ds_read_b64_tr_b16 v[{50+4*st}:{51+4*st}], v15 offset:{st*1024+256}')
        self.stamp(10)
        self.poll_head('L_wo_p1')
        a(f'''
        buffer_load_dwordx2 v[16:17], v10, s[28:31], s56 offen sc1
        buffer_load_dwordx4 v[32:35], v11, s[28:31], s55 offen sc1
        buffer_load_dwordx4 v[36:39], v11, s[28:31], s55 offen offset:32 sc1
        buffer_load_dwordx4 v[40:43], v11, s[28:31], s55 offen offset:64 sc1
        buffer_load_dwordx4 v[44:47], v11, s[28:31], s55 offen offset:96 sc1
        s_waitcnt vmcnt(0)
        v_max3_u32 v18, v16, v17, v32
        v_max3_u32 v19, v33, v34, v35
        v_max3_u32 v18, v18, v36, v37
        v_max3_u32 v19, v19, v38, v39
        v_max3_u32 v18, v18, v40, v41
        v_max3_u32 v19, v19, v42, v43
        v_max3_u32 v18, v18, v44, v45
        v_max3_u32 v19, v19, v46, v47
        v_max_u32 v18, v18, v19
        v_cmp_eq_u32 vcc, -1, v18
        ''')
        self.poll_tail('L_wo_p1')
        self.stamp(11)
        a(f'''
        s_waitcnt lgkmcnt(0)
        v_mfma_f32_32x32x16_bf16 v[64:79], v[32:35], v[48:51], 0
        v_mfma_f32_32x32x16_bf16 v[64:79], v[36:39], v[52:55], v[64:79]
        v_mfma_f32_32x32x16_bf16 v[64:79], v[40:43], v[56:59], v[64:79]
        v_mfma_f32_32x32x16_bf16 v[64:79], v[44:47], v[60:63], v[64:79]
        v_mov_b32 v18, v16
        ''')
        for r in (8, 4, 2, 1):
            self.nop(2)
            a(f'v_max_f32_dpp v18, v18, v18 row_ror:{r} row_mask:0xf bank_mask:0xf')
        a('v_mov_b32 v19, v18')
        self.nop(2)
        a('v_permlane16_swap_b32 v18, v19')
        self.nop(1)
        a(f'''
        v_max_f32 v18, v18, v19
        v_sub_f32 v16, v16, v18
        v_mul_f32 v16, {LOG2E}, v16
        v_exp_f32 v16, v16
        s_nop 0
        v_mul_f32 v17, v16, v17
        ''')
        for r in (8, 4, 2, 1):
            self.nop(2)
            a(f'v_add_f32_dpp v17, v17, v17 row_ror:{r} row_mask:0xf bank_mask:0xf')
        a('v_mov_b32 v19, v17')
        self.nop(2)
        a('v_permlane16_swap_b32 v17, v19')
        self.nop(1)
        a(f'''
        v_add_f32 v17, v17, v19
        v_rcp_f32 v17, v17
        s_nop 0
        v_mul_f32 v16, v16, v17
        s_lshl_b32 s7, s3, 7
        s_add_u32 s7, s7, {L_W}
        v_lshlrev_b32 v18, 2, v8
        v_add_u32 v18, s7, v18
        v_lshlrev_b32 v19, 4, v9
        v_add_u32 v19, s7, v19                 ; L_W + w*128 + half*16
        s_mov_b32 exec_hi, 0
        ds_write_b32 v18, v16
        s_mov_b64 exec, -1
        s_waitcnt lgkmcnt(0)
        ds_read_b128 v[80:83], v19
        ds_read_b128 v[84:87], v19 offset:32
        ds_read_b128 v[88:91], v19 offset:64
        ds_read_b128 v[92:95], v19 offset:96
        s_waitcnt lgkmcnt(0)
        v_mul_f32 v20, v64, v80
        v_mul_f32 v21, v65, v81
        v_mul_f32 v22, v66, v82
        v_mul_f32 v23, v67, v83
        ''')
        for r in range(4, 16):
            a(f'v_fmac_f32 v{20+(r&3)}, v{64+r}, v{80+r}')
        a('''
        v_add_f32 v20, v20, v21
        v_add_f32 v22, v22, v23
        v_add_f32 v20, v20, v22
        v_mov_b32 v21, v20
        s_nop 1
        v_permlane32_swap_b32 v20, v21
        s_nop 0
        v_add_f32 v20, v20, v21
        ''')
        a(f'''
        s_lshl_b32 s7, s3, 7
        s_add_u32 s7, s7, {L_OP}
        v_lshlrev_b32 v18, 2, v8
        v_add_u32 v18, s7, v18
        s_mov_b32 exec_hi, 0
        ds_write_b32 v18, v20
        s_mov_b64 exec, -1
        s_waitcnt lgkmcnt(0)
        s_barrier
        s_cmp_lg_u32 s3, 0
        s_cbranch_scc1 L_wo_end
        v_and_b32 v18, 7, v0
        v_lshlrev_b32 v18, 4, v18              ; quad*16
        v_add_u32 v19, {L_OP}, v18
        ''')
        for w in range(8):
            a(f'ds_read_b128 v[{32+4*w}:{35+4*w}], v19 offset:{w*128}')
        a(f'''
        v_lshrrev_b32 v20, 3, v0
        v_lshlrev_b32 v20, 14, v20
        v_add_u32 v20, v20, v18
        s_lshl_b32 s7, s4, 11
        s_lshl_b32 s44, s5, 7
        s_add_u32 s7, s7, s44
        s_add_u32 s55, s7, {WS_H3}
        s_waitcnt lgkmcnt(0)
        ''')
        for k in range(4):
            a(f'v_add_f32 v{32+k}, v{32+k}, v{36+k}')
            a(f'v_add_f32 v{40+k}, v{40+k}, v{44+k}')
            a(f'v_add_f32 v{48+k}, v{48+k}, v{52+k}')
            a(f'v_add_f32 v{56+k}, v{56+k}, v{60+k}')
        for k in range(4):
            a(f'v_add_f32 v{32+k}, v{32+k}, v{40+k}')
            a(f'v_add_f32 v{48+k}, v{48+k}, v{56+k}')
        for k in range(4):
            a(f'v_add_f32 v{32+k}, v{32+k}, v{48+k}')
        self.tag_insert(['v32', 'v33', 'v34', 'v35'], 's7')
        a('buffer_store_dwordx4 v[32:35], v20, s[28:31], s55 offen sc1')
        self.stamp(12)
        a('L_wo_end:')
        self.stamp_flush('wo')
        a('s_endpgm')

    def gather_h(self, lab, colbase_sgpr):
        a = self.a
        a(f'''
        v_lshlrev_b32 v8, 11, v4               ; pq*2048
        v_lshl_or_b32 v8, v3, 4, v8            ; + cq*16
        s_lshl_b32 s7, s4, 14                  ; x*8*2048
        s_add_u32 s7, s7, {WS_H3}
        s_add_u32 s55, s7, {colbase_sgpr}
        s_add_u32 s56, s55, 8192
        ''')
        self.tag_consts()
        self.stamp(10)
        self.poll_head(lab)
        a(f'''
        buffer_load_dwordx4 v[32:35], v8, s[28:31], s55 offen sc1
        buffer_load_dwordx4 v[36:39], v8, s[28:31], s56 offen sc1
        s_waitcnt vmcnt(0)
        ''')
        self.tag_check([32, 36], 'v40', 'v41')
        self.poll_tail(lab)
        self.stamp(11)
        for k in range(8):
            a(f'v_and_b32 v{32+k}, 0xffffff00, v{32+k}')
        for k in range(4):
            a(f'v_add_f32 v{20+k}, v{32+k}, v{36+k}')
        for k in range(4):
            a(f'v_mov_b32 v{32+k}, v{20+k}')
        self.nop(1)
        for k in range(4):
            a(f'v_permlane16_swap_b32 v{20+k}, v{32+k}')
        self.nop(1)
        for k in range(4):
            a(f'v_add_f32 v{20+k}, v{20+k}, v{32+k}')
        for k in range(4):
            a(f'v_mov_b32 v{32+k}, v{20+k}')
        self.nop(1)
        for k in range(4):
            a(f'v_permlane32_swap_b32 v{20+k}, v{32+k}')
        self.nop(1)
        for k in range(4):
            a(f'v_add_f32 v{20+k}, v{20+k}, v{32+k}')
        a('''
        v_cvt_pk_bf16_f32 v24, v20, v21
        v_cvt_pk_bf16_f32 v25, v22, v23
        v_lshlrev_b32 v20, 16, v24
        v_and_b32 v21, 0xffff0000, v24
        v_lshlrev_b32 v22, 16, v25
        v_and_b32 v23, 0xffff0000, v25
        v_lshlrev_b32 v32, 16, v18
        v_and_b32 v33, 0xffff0000, v18
        v_lshlrev_b32 v34, 16, v19
        v_and_b32 v35, 0xffff0000, v19
        v_add_f32 v20, v20, v32
        v_add_f32 v21, v21, v33
        v_add_f32 v22, v22, v34
        v_add_f32 v23, v23, v35
        v_cvt_pk_bf16_f32 v24, v20, v21
        v_cvt_pk_bf16_f32 v25, v22, v23
        v_lshlrev_b32 v20, 16, v24
        v_and_b32 v21, 0xffff0000, v24
        v_lshlrev_b32 v22, 16, v25
        v_and_b32 v23, 0xffff0000, v25
        ''')

    def role_mlp(self):
        a = self.a; polw = self.o['polw']
        a('L_mlp:')
        a(f'''
        s_mul_i32 s57, s4, 14
        s_add_u32 s57, s57, s5
        s_sub_u32 s57, s57, 16                 ; p
        v_lshrrev_b32 v14, 1, v0
        s_mov_b32 s7, 3584
        v_mul_lo_u32 v14, v14, s7
        v_and_b32 v15, 1, v0
        v_lshl_or_b32 v15, v15, 4, 0
        v_add_u32 v14, v14, v15
        s_mul_i32 s44, s3, {64*3584}
        s_lshl_b32 s45, s57, 5
        s_add_u32 s44, s44, s45
        s_mov_b32 m0, s39
        s_add_u32 s45, s44, {32*3584-1024}
        buffer_load_dwordx4 v14, s[20:23], s44 offen {polw} lds
        buffer_load_dwordx4 v14, s[20:23], s45 offen offset:1024 {polw} lds
        v_lshlrev_b32 v15, 12, v4
        v_lshl_or_b32 v15, v3, 3, v15          ; + j*8
        s_lshl_b32 s44, s57, 14                ; 16p*1024
        s_lshl_b32 s45, s3, 7                  ; 64w*2
        s_add_u32 s44, s44, s45
        buffer_load_dwordx2 v[48:49], v15, s[24:27], s44 offen {polw}
        buffer_load_dwordx2 v[50:51], v15, s[24:27], s44 offen offset:1024 {polw}
        buffer_load_dwordx2 v[52:53], v15, s[24:27], s44 offen offset:2048 {polw}
        buffer_load_dwordx2 v[54:55], v15, s[24:27], s44 offen offset:3072 {polw}
        v_lshlrev_b32 v16, 3, v3
        s_lshl_b32 s45, s3, 7
        v_add_u32 v16, s45, v16
        global_load_dwordx2 v[18:19], v16, s[32:33]
        v_lshlrev_b32 v12, 3, v0
        v_add_u32 v12, s39, v12
        s_waitcnt vmcnt(5)
        ds_read_b64_tr_b16 v[56:57], v12
        ds_read_b64_tr_b16 v[58:59], v12 offset:512
        ds_read_b64_tr_b16 v[60:61], v12 offset:1024
        ds_read_b64_tr_b16 v[62:63], v12 offset:1536
        v_mov_b32 v64, 0x3f803f80
        v_mov_b32 v65, 0x3f803f80
        v_mov_b32 v66, 0x3f803f80
        v_mov_b32 v67, 0x3f803f80
        s_waitcnt lgkmcnt(0)
        v_mfma_f32_16x16x32_bf16 v[68:71], v[64:67], v[56:59], 0
        v_mfma_f32_16x16x32_bf16 v[68:71], v[64:67], v[60:63], v[68:71]
        s_lshl_b32 s7, s3, 6
        s_add_u32 s7, s7, {L_CS}
        v_lshlrev_b32 v13, 2, v0
        v_add_u32 v13, s7, v13
        s_mov_b64 exec, 0xffff
        s_nop 4
        ds_write_b32 v13, v68
        s_mov_b64 exec, -1
        s_waitcnt vmcnt(0)
        s_mov_b32 s44, 0x05040100
        s_mov_b32 s45, 0x07060302
        v_perm_b32 v72, v50, v48, s44
        v_perm_b32 v73, v54, v52, s44
        v_perm_b32 v74, v50, v48, s45          ; t=1
        v_perm_b32 v75, v54, v52, s45
        v_perm_b32 v76, v51, v49, s44          ; t=2
        v_perm_b32 v77, v55, v53, s44
        v_perm_b32 v78, v51, v49, s45          ; t=3
        v_perm_b32 v79, v55, v53, s45
        s_waitcnt lgkmcnt(0)
        s_barrier
        v_lshlrev_b32 v13, 4, v4
        v_add_u32 v13, {L_CS}, v13
        ''')
        for w in range(8):
            a(f'ds_read_b128 v[{80+4*w}:{83+4*w}], v13 offset:{w*64}')
        a('s_waitcnt lgkmcnt(0)')
        for k in range(4):
            a(f'v_add_f32 v{80+k}, v{80+k}, v{84+k}')
            a(f'v_add_f32 v{88+k}, v{88+k}, v{92+k}')
            a(f'v_add_f32 v{96+k}, v{96+k}, v{100+k}')
            a(f'v_add_f32 v{104+k}, v{104+k}, v{108+k}')
        for k in range(4):
            a(f'v_add_f32 v{80+k}, v{80+k}, v{88+k}')
            a(f'v_add_f32 v{96+k}, v{96+k}, v{104+k}')
        for k in range(4):
            a(f'v_add_f32 v{80+k}, v{80+k}, v{96+k}')
        a('s_lshl_b32 s58, s3, 8')
        self.gather_h('L_mlp_p', 's58')
        a(f'''
        v_add_f32 v26, v20, v21
        v_add_f32 v27, v22, v23
        v_add_f32 v26, v26, v27
        v_mul_f32 v27, v20, v20
        v_fmac_f32 v27, v21, v21
        v_fmac_f32 v27, v22, v22
        v_fmac_f32 v27, v23, v23
        s_lshl_b32 s7, s3, 7
        s_add_u32 s7, s7, {L_LN}
        v_lshlrev_b32 v28, 3, v3
        v_add_u32 v28, s7, v28
        s_mov_b64 exec, 0xffff
        ds_write_b64 v28, v[24:25]
        s_mov_b64 exec, -1
        v_lshlrev_b32 v29, 3, v4
        v_add_u32 v29, s7, v29                 ; + kq*8
        ''')
        for r in (8, 4, 2, 1):
            a(f'v_add_f32_dpp v26, v26, v26 row_ror:{r} row_mask:0xf bank_mask:0xf')
            a(f'v_add_f32_dpp v27, v27, v27 row_ror:{r} row_mask:0xf bank_mask:0xf')
            self.nop(1)
        a(f'''
        s_waitcnt lgkmcnt(0)
        ds_read2_b64 v[32:35], v29 offset0:0 offset1:4
        ds_read2_b64 v[36:39], v29 offset0:8 offset1:12
        s_lshl_b32 s7, s3, 3
        s_add_u32 s7, s7, {L_ST}
        v_mov_b32 v30, s7
        s_mov_b64 exec, 1
        ds_write_b64 v30, v[26:27]
        s_mov_b64 exec, -1
        s_waitcnt lgkmcnt(0)
        v_mfma_f32_16x16x32_bf16 v[40:43], v[32:35], v[56:59], 0
        v_mfma_f32_16x16x32_bf16 v[40:43], v[36:39], v[60:63], v[40:43]
        s_lshl_b32 s7, s3, 6
        s_add_u32 s7, s7, {L_QP}
        v_lshlrev_b32 v13, 2, v0
        v_add_u32 v13, s7, v13
        s_mov_b64 exec, 0xffff
        s_nop 4
        ds_write_b32 v13, v40
        s_mov_b64 exec, -1
        s_waitcnt lgkmcnt(0)
        s_barrier
        v_lshlrev_b32 v13, 4, v4
        v_add_u32 v13, {L_QP}, v13
        v_mov_b32 v14, {L_ST}
        ''')
        for w in range(8):
            a(f'ds_read_b128 v[{84+4*w}:{87+4*w}], v13 offset:{w*64}')
        for i in range(4):
            a(f'ds_read_b128 v[{32+4*i}:{35+4*i}], v14 offset:{i*16}')
        a('s_waitcnt lgkmcnt(0)')
        a('''
        v_add_f32 v32, v32, v34
        v_add_f32 v33, v33, v35
        v_add_f32 v36, v36, v38
        v_add_f32 v37, v37, v39
        v_add_f32 v40, v40, v42
        v_add_f32 v41, v41, v43
        v_add_f32 v44, v44, v46
        v_add_f32 v45, v45, v47
        v_add_f32 v32, v32, v36
        v_add_f32 v33, v33, v37
        v_add_f32 v40, v40, v44
        v_add_f32 v41, v41, v45
        v_add_f32 v32, v32, v40
        v_add_f32 v33, v33, v41
        v_mul_f32 v32, 0x3b000000, v32         ; mean
        v_mul_f32 v33, 0x3b000000, v33         ; E[h^2]
        v_fma_f32 v33, -v32, v32, v33          ; var
        v_max_f32 v33, 0, v33
        v_add_f32 v33, 0x3727c5ac, v33
        v_rsq_f32 v33, v33
        ''')
        for k in range(4):
            a(f'v_add_f32 v{84+k}, v{84+k}, v{88+k}')
            a(f'v_add_f32 v{92+k}, v{92+k}, v{96+k}')
            a(f'v_add_f32 v{100+k}, v{100+k}, v{104+k}')
            a(f'v_add_f32 v{108+k}, v{108+k}, v{112+k}')
        for k in range(4):
            a(f'v_add_f32 v{84+k}, v{84+k}, v{92+k}')
            a(f'v_add_f32 v{100+k}, v{100+k}, v{108+k}')
        for k in range(4):
            a(f'v_add_f32 v{84+k}, v{84+k}, v{100+k}')
        for k in range(4):
            a(f'v_fma_f32 v{84+k}, -v32, v{80+k}, v{84+k}')
        for k in range(4):
            a(f'v_mul_f32 v{84+k}, v{84+k}, v33')
        a('''
        v_cvt_pk_bf16_f32 v34, v84, v85
        v_cvt_pk_bf16_f32 v35, v86, v87
        v_lshlrev_b32 v84, 16, v34
        v_and_b32 v85, 0xffff0000, v34
        v_lshlrev_b32 v86, 16, v35
        v_and_b32 v87, 0xffff0000, v35
        ''')
        for k in range(4):
            a(f'v_mul_f32 v{88+k}, 0xbfb8aa3b, v{84+k}')
        for k in range(4):
            a(f'v_exp_f32 v{88+k}, v{88+k}')
        a('s_nop 0')
        for k in range(4):
            a(f'v_add_f32 v{88+k}, 1.0, v{88+k}')
        for k in range(4):
            a(f'v_rcp_f32 v{88+k}, v{88+k}')
        a('s_nop 0')
        for k in range(4):
            a(f'v_mul_f32 v{84+k}, v{84+k}, v{88+k}')
        a(f'''
        v_cvt_pk_bf16_f32 v34, v84, v85
        v_cvt_pk_bf16_f32 v35, v86, v87
        s_nop 1
        v_mfma_f32_16x16x16_bf16 v[36:39], v[34:35], v[72:73], 0
        v_mfma_f32_16x16x16_bf16 v[40:43], v[34:35], v[74:75], 0
        v_mfma_f32_16x16x16_bf16 v[44:47], v[34:35], v[76:77], 0
        v_mfma_f32_16x16x16_bf16 v[48:51], v[34:35], v[78:79], 0
        v_lshlrev_b32 v13, 4, v3               ; j*16
        s_lshl_b32 s7, s57, 11
        s_lshl_b32 s44, s3, 8
        s_add_u32 s7, s7, s44
        s_add_u32 s55, s7, {WS_H4}
        s_nop 4
        v_mov_b32 v52, v36
        v_mov_b32 v53, v40
        v_mov_b32 v54, v44
        v_mov_b32 v55, v48
        ''')
        self.tag_insert(['v52', 'v53', 'v54', 'v55'], 's7')
        a('''
        s_mov_b64 exec, 0xffff
        buffer_store_dwordx4 v[52:55], v13, s[28:31], s55 offen sc1
        s_mov_b64 exec, -1
        ''')
        self.stamp(12)
        self.stamp_flush('mlp')
        a('s_endpgm')

    def role_fin(self):
        a = self.a
        a('L_fin:')
        a(f'''
        s_lshl_b32 s57, s4, 1
        s_add_u32 s57, s57, s5
        s_sub_u32 s57, s57, 30                 ; f
        v_and_b32 v16, 7, v3
        v_lshlrev_b32 v16, 3, v16
        s_lshl_b32 s45, s57, 6
        v_add_u32 v16, s45, v16
        global_load_dwordx2 v[18:19], v16, s[32:33]
        s_waitcnt vmcnt(0)
        s_cmp_lg_u32 s3, 0
        s_cbranch_scc1 L_fin_h4
        ''')
        a('v_mov_b32 v5, v3')
        a('v_and_b32 v3, 7, v3')
        a('s_lshl_b32 s58, s57, 7')
        self.gather_h('L_fin_p', 's58')
        a('v_mov_b32 v3, v5')
        a('L_fin_h4:')
        self.tag_consts()
        a(f'''
        v_and_b32 v8, 7, v0
        v_lshrrev_b32 v9, 3, v0
        v_lshlrev_b32 v10, 11, v9
        v_lshl_or_b32 v10, v8, 4, v10
        s_lshl_b32 s7, s3, 14                  ; w*8*2048
        s_lshl_b32 s44, s57, 7                 ; f*128
        s_add_u32 s7, s7, s44
        s_add_u32 s55, s7, {WS_H4}
        s_add_u32 s56, s55, {64*2048}
        s_cmp_lt_u32 s3, 6
        s_cselect_b32 s56, s56, s55
        s_cselect_b32 s59, 1.0, 0
        ''')
        self.poll_head('L_fin_p4')
        a('''
        buffer_load_dwordx4 v[32:35], v10, s[28:31], s55 offen sc1
        buffer_load_dwordx4 v[36:39], v10, s[28:31], s56 offen sc1
        s_waitcnt vmcnt(0)
        ''')
        self.tag_check([32, 36], 'v40', 'v41')
        self.poll_tail('L_fin_p4')
        self.stamp(12)
        for k in range(8):
            a(f'v_and_b32 v{32+k}, 0xffffff00, v{32+k}')
        for k in range(4):
            a(f'v_fma_f32 v{32+k}, v{36+k}, s59, v{32+k}')
        self.nop(1)
        for k in range(4):
            a(f'v_add_f32_dpp v{32+k}, v{32+k}, v{32+k} row_ror:8 row_mask:0xf bank_mask:0xf')
        for k in range(4):
            a(f'v_mov_b32 v{36+k}, v{32+k}')
        self.nop(1)
        for k in range(4):
            a(f'v_permlane16_swap_b32 v{32+k}, v{36+k}')
        self.nop(1)
        for k in range(4):
            a(f'v_add_f32 v{32+k}, v{32+k}, v{36+k}')
        for k in range(4):
            a(f'v_mov_b32 v{36+k}, v{32+k}')
        self.nop(1)
        for k in range(4):
            a(f'v_permlane32_swap_b32 v{32+k}, v{36+k}')
        self.nop(1)
        for k in range(4):
            a(f'v_add_f32 v{32+k}, v{32+k}, v{36+k}')
        a(f'''
        s_lshl_b32 s7, s3, 7
        s_add_u32 s7, s7, {L_OP}
        v_lshlrev_b32 v11, 4, v8
        v_add_u32 v12, s7, v11
        s_mov_b64 exec, 0xff
        ds_write_b128 v12, v[32:35]
        s_mov_b64 exec, -1
        s_waitcnt lgkmcnt(0)
        s_barrier
        s_cmp_lg_u32 s3, 0
        s_cbranch_scc1 L_fin_end
        v_add_u32 v12, {L_OP}, v11
        ''')
        for w in range(8):
            a(f'ds_read_b128 v[{32+4*w}:{35+4*w}], v12 offset:{w*128}')
        a('s_waitcnt lgkmcnt(0)')
        for k in range(4):
            a(f'v_add_f32 v{32+k}, v{32+k}, v{36+k}')
            a(f'v_add_f32 v{40+k}, v{40+k}, v{44+k}')
            a(f'v_add_f32 v{48+k}, v{48+k}, v{52+k}')
            a(f'v_add_f32 v{56+k}, v{56+k}, v{60+k}')
        for k in range(4):
            a(f'v_add_f32 v{32+k}, v{32+k}, v{40+k}')
            a(f'v_add_f32 v{48+k}, v{48+k}, v{56+k}')
        for k in range(4):
            a(f'v_add_f32 v{32+k}, v{32+k}, v{48+k}')
        a(f'''
        v_cvt_pk_bf16_f32 v36, v32, v33
        v_cvt_pk_bf16_f32 v37, v34, v35
        v_lshlrev_b32 v32, 16, v36
        v_and_b32 v33, 0xffff0000, v36
        v_lshlrev_b32 v34, 16, v37
        v_and_b32 v35, 0xffff0000, v37
        v_add_f32 v32, v32, v20
        v_add_f32 v33, v33, v21
        v_add_f32 v34, v34, v22
        v_add_f32 v35, v35, v23
        v_cvt_pk_bf16_f32 v36, v32, v33
        v_cvt_pk_bf16_f32 v37, v34, v35
        v_lshlrev_b32 v11, 3, v8
        s_lshl_b32 s7, s57, 6
        v_add_u32 v11, s7, v11
        s_waitcnt lgkmcnt(0)
        s_mov_b64 exec, 0xff
        global_store_dwordx2 v11, v[36:37], s[34:35]
        s_cmp_lg_u32 s57, 0
        s_cbranch_scc1 L_fin_end
        s_add_u32 s7, s43, 1
        v_mov_b32 v12, s7
        v_mov_b32 v13, 0
        s_mov_b64 exec, 1
        buffer_store_dword v12, v13, s[28:31], 0 offen sc1
        L_fin_end:
        s_mov_b64 exec, -1
        ''')
        self.stamp(13)
        self.stamp_flush('fin')
        a('s_endpgm')

    def comm(self):
        a = self.a
        a('L_comm:')
        a(f'''
        s_getreg_b32 s6, hwreg(HW_REG_XCC_ID, 0, 3)
        s_lshl_b32 s50, s4, 5
        s_add_u32 s50, s50, s5                 ; g*32+s
        s_lshl_b32 s51, s50, 11
        s_add_u32 s51, s51, {WS_OB}
        v_lshlrev_b32 v2, 4, v0                ; lane*16
        v_mov_b32 v8, -1
        v_mov_b32 v9, -1
        v_mov_b32 v10, -1
        v_mov_b32 v11, -1
        s_waitcnt lgkmcnt(0)
        s_load_dword s43, s[28:29], 0x0
        buffer_store_dwordx4 v[8:11], v2, s[28:31], s51 offen sc1
        s_mov_b64 exec, 3
        buffer_store_dwordx4 v[8:11], v2, s[28:31], s51 offen offset:1024 sc1
        s_mov_b64 exec, -1
        s_waitcnt lgkmcnt(0)
        s_mul_i32 s42, s43, 0x9e3779b1
        s_add_u32 s42, s42, 0x7f4a7c15
        s_and_b32 s40, s42, 0xfff8             ; tagA
        s_lshr_b32 s41, s42, 16
        s_and_b32 s41, s41, 0xfff8             ; tagB
        ; addresses
        v_and_b32 v12, 3, v0                   ; gq
        v_bfe_u32 v13, v0, 2, 3                ; w' = (lane>>2)&7
        v_lshlrev_b32 v14, 6, v13
        v_lshl_or_b32 v14, v12, 4, v14
        v_add_u32 v14, {L_QP}, v14             ; q partial read address
        v_lshrrev_b32 v15, 2, v0
        v_lshlrev_b32 v15, 7, v15
        v_lshl_or_b32 v15, v12, 4, v15
        s_lshl_b32 s55, s4, 12
        s_add_u32 s55, s55, {WS_Q}
        s_add_u32 s56, s55, 2048
        s_lshl_b32 s7, s5, 7
        s_add_u32 s57, s55, s7
        s_or_b32 s44, s40, s6
        s_or_b32 s45, s41, s6
        v_mov_b32 v16, s44
        v_mov_b32 v17, s45
        v_mov_b32 v18, s40
        v_mov_b32 v19, s41
        s_waitcnt vmcnt(0)
        ''')
        self.stamp(3)
        a(f'''
        s_barrier                              ; B1
        ds_read_b128 v[20:23], v14
        s_waitcnt lgkmcnt(0)
        ''')
        self.stamp(4)
        for r in (4, 8):
            self.nop(1)
            for k in range(4):
                a(f'v_add_f32_dpp v{20+k}, v{20+k}, v{20+k} row_ror:{r} row_mask:0xf bank_mask:0xf')
        for k in range(4):
            a(f'v_mov_b32 v{24+k}, v{20+k}')
        self.nop(1)
        for k in range(4):
            a(f'v_permlane16_swap_b32 v{20+k}, v{24+k}')
        self.nop(1)
        for k in range(4):
            a(f'v_add_f32 v{20+k}, v{20+k}, v{24+k}')
        a(f'''
        v_cvt_pk_bf16_f32 v24, v20, v21
        v_cvt_pk_bf16_f32 v25, v22, v23
        s_mov_b32 s7, 0xffff0000
        v_lshl_or_b32 v20, v24, 16, v16
        v_and_or_b32 v21, v24, s7, v17
        v_lshl_or_b32 v22, v25, 16, v16
        v_and_or_b32 v23, v25, s7, v17
        v_lshlrev_b32 v26, 4, v12
        s_mov_b64 exec, 0xf
        buffer_store_dwordx4 v[20:23], v26, s[28:31], s57 offen sc1
        s_mov_b64 exec, -1
        s_setprio 3
        ''')
        self.stamp(5)
        self.poll_head('L_q_poll')
        a(f'''
        buffer_load_dwordx4 v[28:31], v15, s[28:31], s55 offen sc1
        buffer_load_dwordx4 v[32:35], v15, s[28:31], s56 offen sc1
        s_waitcnt vmcnt(0)
        v_xor_b32 v36, v28, v18
        v_xor_b32 v37, v29, v19
        v_xor_b32 v38, v30, v18
        v_xor_b32 v39, v31, v19
        v_or3_b32 v36, v36, v37, v38
        v_xor_b32 v37, v32, v18
        v_xor_b32 v38, v33, v19
        v_or3_b32 v36, v36, v39, v37
        v_xor_b32 v39, v34, v18
        v_xor_b32 v37, v35, v19
        v_or3_b32 v36, v36, v38, v39
        v_or_b32 v36, v36, v37
        v_and_b32 v36, 0xfff8, v36
        v_cmp_ne_u32 vcc, 0, v36
        ''')
        self.poll_tail('L_q_poll')
        self.stamp(6)
        a(f'''
        s_mov_b32 s7, 0x07060302
        v_perm_b32 v36, v29, v28, s7
        v_perm_b32 v37, v31, v30, s7
        v_perm_b32 v38, v33, v32, s7
        v_perm_b32 v39, v35, v34, s7
        v_lshlrev_b32 v40, 3, v0
        v_add_u32 v40, {L_Q}, v40
        ds_write_b64 v40, v[36:37]
        ds_write_b64 v40, v[38:39] offset:512
        s_waitcnt lgkmcnt(0)
        s_barrier                              ; B2
        s_barrier                              ; B3
        s_barrier                              ; B4
        v_and_b32 v12, 3, v0
        v_lshlrev_b32 v13, 5, v12
        v_add_u32 v13, {L_M}, v13
        ds_read_b128 v[20:23], v13
        ds_read_b128 v[24:27], v13 offset:16
        ds_read_b128 v[28:31], v13 offset:{L_L-L_M}
        ds_read_b128 v[32:35], v13 offset:{L_L-L_M+16}
        v_lshlrev_b32 v14, 3, v12
        s_waitcnt lgkmcnt(0)
        v_max3_f32 v20, v20, v21, v22
        v_max3_f32 v24, v24, v25, v26
        v_max3_f32 v20, v20, v23, v27
        v_max_f32 v20, v20, v24
        v_add_f32 v28, v28, v29
        v_add_f32 v30, v30, v31
        v_add_f32 v32, v32, v33
        v_add_f32 v34, v34, v35
        v_add_f32 v28, v28, v30
        v_add_f32 v32, v32, v34
        v_add_f32 v21, v28, v32
        v_min_u32 v20, -2, v20
        v_min_u32 v21, -2, v21
        s_mov_b64 exec, 0xf
        buffer_store_dwordx2 v[20:21], v14, s[28:31], s51 offen offset:1024 sc1
        s_mov_b64 exec, -1
        ''')
        self.stamp(9)
        self.stamp_flush('comm')
        a('s_endpgm')

if __name__ == '__main__':
    import argparse
    ap = argparse.ArgumentParser()
    ap.add_argument('-o', default='k.s')
    ap.add_argument('--diag', action='store_true')
    ap.add_argument('--opt', action='append', default=[])
    args = ap.parse_args()
    opts = {}
    for kv in args.opt:
        k, v = kv.split('=', 1)
        try: v = int(v)
        except ValueError: pass
        opts[k] = v
    g = Gen(diag=args.diag, opts=opts)
    open(args.o, 'w').write(g.build())
```

```python
import sys
from asmgen import Asm, wrap, NAME

WS_EPOCH = 0
WS_Q     = 4096
WS_OA    = 65536
WS_OB    = WS_OA + 256 * 2048
WS_H3    = WS_OB + 256 * 2048
WS_H4    = WS_H3 + 64 * 2048
WS_END   = WS_H4 + 112 * 2048
WS_DBG   = 16 << 20
STAMP_OFF = 128 << 20

L_R0  = 0
L_V   = 32768
L_LN  = 65536
L_QP  = L_LN + 1024
L_Q   = L_QP + 512
L_M   = L_Q + 1024
L_L   = L_M + 128
L_P   = L_L + 128
L_FLG = L_P + 1024
L_W   = L_FLG + 64
L_OP  = L_W + 1024
L_ST  = L_OP + 1024
L_CS  = L_ST + 64
L_END = L_CS + 512
LDS_BYTES = (L_END + 255) // 256 * 256

LOG2E = 0x3fb8aa3b
SCALE = 0x3db504f3

class Gen:
    def __init__(self, diag=False, dump=False, opts=None):
        self.a = Asm()
        self.diag = diag
        self.dump = dump
        self.o = dict(pol='nt', polwq='nt', polw='nt', useA=False, spin=40000)
        if opts: self.o.update(opts)
        self.nstamp = 0
    def __call__(self, s): self.a(s)
    def nop(self, n):
        if n > 0: self.a(f's_nop {n-1}')
    def stamp(self, k):
        if self.diag:
            self.a(f's_memrealtime s[{64+2*k}:{65+2*k}]')
    def stamp_init(self):
        if self.diag:
            for k in range(16):
                self.a(f's_mov_b64 s[{64+2*k}:{65+2*k}], 0')
    def stamp_flush(self, lab):
        if not self.diag: return
        a = self.a
        if self.o.get('dbgstamps'):
            m = {'wo': {1:3, 2:4, 3:5, 4:6, 5:7, 6:8, 7:9, 8:11, 9:12, 15:1}, 'mlp': {10:11, 11:12}, 'fin': {12:12, 13:13}, 'comm': {14:6}}[lab]
            sk = a.lab('L_sk')
            a('s_and_b32 s44, s3, 7')
            a('s_cmp_lg_u32 s44, 0')
            a(f's_cbranch_scc1 {sk}')
            a('s_and_b32 s44, s5, 1')
            a('s_cmp_lg_u32 s44, 0')
            a(f's_cbranch_scc1 {sk}')
            a('s_waitcnt lgkmcnt(0)')
            a('s_mov_b64 exec, 1')
            a('s_load_dwordx2 s[44:45], s[0:1], 72')
            a('s_waitcnt lgkmcnt(0)')
            a('s_mov_b32 s46, 256')
            a('s_mov_b32 s47, 0x20000')
            a('v_mov_b32 v1, 0')
            a('s_not_b32 s64, s64')
            a('v_mov_b32 v2, s64')
            a('buffer_atomic_umax v2, v1, s[44:47], 0 offen')
            for idx, k in m.items():
                a(f'v_mov_b32 v3, s{64+2*k}')
                a(f'buffer_atomic_umax v3, v1, s[44:47], 0 offen offset:{4*idx}')
                a('s_nop 1')
            a('s_waitcnt vmcnt(0)')
            a(f'{sk}:')
            return
        a('s_waitcnt lgkmcnt(0)')
        a('s_mov_b64 exec, 1')
        a('s_mul_i32 s44, s2, 9')
        a('s_add_u32 s44, s44, s3')
        a('s_lshl_b32 s44, s44, 7')
        a(f's_add_u32 s44, s44, {STAMP_OFF}')
        a('v_mov_b32 v1, 0')
        for k in range(16):
            a(f'v_mov_b32 v2, s{64+2*k}')
            a(f'v_mov_b32 v3, s{65+2*k}')
            a(f'buffer_store_dwordx2 v[2:3], v1, s[28:31], s44 offen offset:{8*k}')
            a('s_nop 1')
        a('s_waitcnt vmcnt(0)')

    def allreduce64(self, v, tmp, op='add'):
        a = self.a
        ins = 'v_add_f32' if op == 'add' else 'v_max_f32'
        for r in (8, 4, 2, 1):
            self.nop(2)
            a(f'{ins}_dpp {v}, {v}, {v} row_ror:{r} row_mask:0xf bank_mask:0xf')
        self.rows_reduce(v, tmp, op)
    def rows_reduce(self, v, tmp, op='add'):
        a = self.a
        ins = 'v_add_f32' if op == 'add' else 'v_max_f32'
        a(f'v_mov_b32 {tmp}, {v}')
        self.nop(2)
        a(f'v_permlane16_swap_b32 {v}, {tmp}')
        self.nop(1)
        a(f'{ins} {v}, {v}, {tmp}')
        a(f'v_mov_b32 {tmp}, {v}')
        self.nop(2)
        a(f'v_permlane32_swap_b32 {v}, {tmp}')
        self.nop(1)
        a(f'{ins} {v}, {v}, {tmp}')

    def poll_head(self, lab):
        a = self.a
        a(f's_mov_b32 s52, {self.o["spin"]}')
        a(f'{lab}:')
    def poll_tail(self, lab):
        a = self.a
        a(f's_cbranch_vccz {lab}_ok')
        a('s_sub_u32 s52, s52, 1')
        a(f's_cbranch_scc0 {lab}')
        a(f'{lab}_ok:')

    def dbg_store(self, vreg, ndw, off_expr_sgpr_setup, voff, cond=None):
        pass

    def build(self):
        a = self.a; o = self.o
        pol, polwq, polw = o['pol'], o['polwq'], o['polw']
        self.stamp_init_pre = None
        if self.diag: a('s_memrealtime s[64:65]')
        a('''
        s_cmp_ge_u32 s2, 256
        s_cbranch_scc1 L_exit
        s_load_dwordx2 s[16:17], s[0:1], 24
        s_load_dwordx2 s[32:33], s[0:1], 0
        s_load_dwordx2 s[8:9], s[0:1], 8
        s_load_dwordx2 s[12:13], s[0:1], 16
        s_load_dwordx2 s[28:29], s[0:1], 80
        v_lshrrev_b32 v1, 6, v0
        v_and_b32 v0, 63, v0
        s_and_b32 s4, s2, 7
        s_lshr_b32 s5, s2, 3
        v_readfirstlane_b32 s3, v1
        s_mov_b32 s18, 4194304
        s_mov_b32 s19, 0x20000
        s_mov_b32 s10, 67108864
        s_mov_b32 s11, 0x20000
        s_mov_b32 s14, 67108864
        s_mov_b32 s15, 0x20000
        s_mov_b32 s30, 0x10000000
        s_mov_b32 s31, 0x20000
        ''')
        if self.diag:
            for k in range(1, 16): a(f's_mov_b64 s[{64+2*k}:{65+2*k}], 0')
        a('s_cmp_eq_u32 s3, 8')
        a('s_cbranch_scc1 L_comm')
        a(f'''
        v_lshrrev_b32 v1, 1, v0
        v_lshlrev_b32 v1, 13, v1
        v_and_b32 v2, 1, v0
        v_lshl_or_b32 v1, v2, 4, v1
        v_lshlrev_b32 v2, 4, v0                ; v2 = lane*16
        v_and_b32 v3, 15, v0                   ; v3 = lane&15
        v_lshrrev_b32 v4, 4, v0                ; v4 = lane>>4
        v_lshlrev_b32 v5, 8, v3
        v_lshl_or_b32 v5, v4, 4, v5            ; v5 = K voffset
        v_lshlrev_b32 v6, 1, v4
        v_xor_b32 v6, v6, v3
        v_lshlrev_b32 v6, 4, v6
        v_lshl_or_b32 v6, v4, 8, v6
        v_xor_b32 v7, 128, v6
        s_lshl_b32 s37, s3, 19
        s_lshl_b32 s7, s4, 10
        s_add_u32 s37, s37, s7
        s_lshl_b32 s7, s5, 5
        s_add_u32 s37, s37, s7
        s_add_u32 s38, s37, {262144-1024}      ; wq soffset 1 (imm offset 1024 added)
        s_lshl_b32 s36, s4, 23
        s_lshl_b32 s7, s5, 15
        s_add_u32 s36, s36, s7
        s_lshl_b32 s7, s3, 12
        s_add_u32 s36, s36, s7
        s_add_u32 s36, s36, {28672*256}        ; K/V soffset
        s_lshl_b32 s39, s3, 12                 ; w*4096
        s_mov_b32 m0, s39                      ; L_R0 + w*4096
        s_waitcnt lgkmcnt(0)
        global_load_dwordx4 v[8:11], v2, s[32:33]
        buffer_load_dwordx4 v1, s[16:19], s37 offen {polwq} lds
        buffer_load_dwordx4 v1, s[16:19], s38 offen offset:1024 {polwq} lds
        buffer_load_dwordx4 v[16:19], v5, s[8:11], s36 offen {pol}
        ''')
        self.stamp(1)
        a('''
        s_load_dwordx2 s[34:35], s[0:1], 64
        s_load_dword s43, s[28:29], 0x0
        s_load_dwordx2 s[24:25], s[0:1], 56
        s_load_dwordx2 s[20:21], s[0:1], 32
        s_load_dwordx2 s[60:61], s[0:1], 48
        s_mov_b32 s48, 0x000f000f
        s_mov_b32 s49, 0x000f000f
        s_mov_b32 s23, 0x20000
        s_mov_b32 s26, 1835008
        s_mov_b32 s27, 0x20000
        ''')
        a('s_waitcnt vmcnt(3)')
        self.stamp(2)
        for k in range(4):
            a(f'v_lshlrev_b32 v{20+2*k}, 16, v{8+k}')
            a(f'v_and_b32 v{21+2*k}, 0xffff0000, v{8+k}')
        a('''
        v_add_f32 v28, v20, v21
        v_add_f32 v29, v22, v23
        v_add_f32 v30, v24, v25
        v_add_f32 v31, v26, v27
        v_add_f32 v28, v28, v29
        v_add_f32 v30, v30, v31
        v_add_f32 v28, v28, v30
        ''')
        self.allreduce64('v28', 'v29')
        a('v_mul_f32 v28, 0x3b000000, v28        ; mean')
        for k in range(8):
            a(f'v_sub_f32 v{32+k}, v{20+k}, v28')
        a('v_mul_f32 v29, v32, v32')
        for k in range(1, 8):
            a(f'v_fmac_f32 v29, v{32+k}, v{32+k}')
        self.allreduce64('v29', 'v30')
        a('''
        v_mul_f32 v29, 0x3b000000, v29        ; var
        v_cvt_pk_bf16_f32 v30, v28, v29
        v_lshlrev_b32 v28, 16, v30
        v_and_b32 v29, 0xffff0000, v30
        v_add_f32 v29, 0x3727c5ac, v29        ; + 1e-5
        v_cvt_pk_bf16_f32 v29, v29, v29
        v_and_b32 v29, 0xffff0000, v29
        v_sqrt_f32 v29, v29
        s_nop 0
        v_cvt_pk_bf16_f32 v29, v29, v29
        v_and_b32 v29, 0xffff0000, v29
        v_rcp_f32 v30, v29
        ''')
        for k in range(8):
            a(f'v_sub_f32 v{32+k}, v{20+k}, v28')
        for k in range(4):
            a(f'v_cvt_pk_bf16_f32 v{40+k}, v{32+2*k}, v{33+2*k}')
        for k in range(4):
            a(f'v_lshlrev_b32 v{32+2*k}, 16, v{40+k}')
            a(f'v_and_b32 v{33+2*k}, 0xffff0000, v{40+k}')
        for k in range(8):
            a(f'v_mul_f32 v{20+k}, v{32+k}, v30')
        for k in range(8):
            a(f'v_fma_f32 v{40+k}, -v{20+k}, v29, v{32+k}')
        for k in range(8):
            a(f'v_fmac_f32 v{20+k}, v{40+k}, v30')
        for k in range(4):
            a(f'v_cvt_pk_bf16_f32 v{40+k}, v{20+2*k}, v{21+2*k}')
        a(f'''
        v_lshrrev_b32 v28, 3, v0
        v_and_b32 v29, 7, v0
        v_lshlrev_b32 v29, 4, v29
        s_lshl_b32 s7, s3, 7
        s_add_u32 s7, s7, {L_LN}
        v_add_u32 v29, s7, v29
        v_cmp_eq_u32 vcc, s3, v28
        s_and_saveexec_b64 s[44:45], vcc
        ds_write_b128 v29, v[40:43]
        s_mov_b64 exec, s[44:45]
        v_lshlrev_b32 v28, 3, v4
        v_add_u32 v28, s7, v28
        s_waitcnt lgkmcnt(0)
        s_mov_b32 s22, 4194304
        s_cmp_lt_u32 s5, 16
        s_cselect_b32 s20, s20, s60
        s_cselect_b32 s21, s21, s61
        s_cselect_b32 s22, s22, s26
        ds_read2_b64 v[20:23], v28 offset0:0 offset1:4
        ds_read2_b64 v[24:27], v28 offset0:8 offset1:12
        v_lshlrev_b32 v12, 3, v0
        v_add_u32 v12, s39, v12                ; L_R0 + w*4096 + lane*8
        ''')
        a('s_waitcnt vmcnt(1)')
        self.stamp(3)
        a(f'''
        buffer_load_dwordx4 v[48:51], v5, s[8:11], s36 offen offset:64 {pol}
        buffer_load_dwordx4 v[52:55], v5, s[8:11], s36 offen offset:128 {pol}
        ds_read_b64_tr_b16 v[32:33], v12
        ds_read_b64_tr_b16 v[34:35], v12 offset:512
        ds_read_b64_tr_b16 v[36:37], v12 offset:1024
        ds_read_b64_tr_b16 v[38:39], v12 offset:1536
        s_waitcnt lgkmcnt(0)
        v_mfma_f32_16x16x32_bf16 v[40:43], v[20:23], v[32:35], 0
        v_mfma_f32_16x16x32_bf16 v[40:43], v[24:27], v[36:39], v[40:43]
        v_lshlrev_b32 v13, 2, v0
        s_lshl_b32 s7, s3, 6
        s_add_u32 s7, s7, {L_QP}
        v_add_u32 v13, s7, v13
        s_mov_b64 exec, 0xffff
        s_nop 4
        ds_write_b32 v13, v40
        s_mov_b64 exec, -1
        s_waitcnt lgkmcnt(0)
        s_barrier                              ; B1
        ''')
        self.stamp(4)
        a(f'''
        s_add_u32 s7, s39, {L_V}
        s_mov_b32 m0, s7
        s_waitcnt vmcnt(2)
        buffer_load_dwordx4 v[56:59], v5, s[8:11], s36 offen offset:192 {pol}
        s_waitcnt vmcnt(2)
        buffer_load_dwordx4 v6, s[12:15], s36 offen {pol} lds
        s_waitcnt vmcnt(2)
        buffer_load_dwordx4 v7, s[12:15], s36 offen offset:1024 {pol} lds
        s_waitcnt vmcnt(2)
        buffer_load_dwordx4 v6, s[12:15], s36 offen offset:2048 {pol} lds
        s_waitcnt vmcnt(2)
        buffer_load_dwordx4 v7, s[12:15], s36 offen offset:3072 {pol} lds
        ''')
        self.stamp(5)
        a('''
        s_waitcnt lgkmcnt(0)
        s_mul_i32 s42, s43, 0x9e3779b1
        s_add_u32 s42, s42, 0x7f4a7c15
        ''')
        a(f'''
        v_and_b32 v8, 3, v0                    ; head = j&3
        v_lshlrev_b32 v9, 8, v8
        v_lshl_or_b32 v9, v4, 4, v9
        v_add_u32 v9, {L_Q}, v9                ; q frag addr
        v_lshlrev_b32 v10, 5, v8
        v_add_u32 v10, {L_M}, v10              ; L_M + head*32
        s_lshl_b32 s7, s3, 2
        v_add_u32 v11, s7, v10                 ; L_M + head*32 + w*4
        s_barrier                              ; B2 : q ready
        ''')
        self.stamp(6)
        a(f'''
        s_mov_b32 m0, s39
        s_cmp_lt_u32 s5, 16
        s_cbranch_scc0 L_rl_notwo
        v_lshrrev_b32 v14, 2, v0
        v_lshlrev_b32 v14, 10, v14
        v_and_b32 v15, 3, v0
        v_lshl_or_b32 v14, v15, 4, v14
        s_lshl_b32 s44, s4, 19
        s_lshl_b32 s45, s3, 16
        s_add_u32 s44, s44, s45
        s_lshl_b32 s45, s5, 6
        s_add_u32 s44, s44, s45
        buffer_load_dwordx4 v14, s[20:23], s44 offen {polw} lds
        s_add_u32 s44, s44, {16384-1024}
        buffer_load_dwordx4 v14, s[20:23], s44 offen offset:1024 {polw} lds
        s_add_u32 s44, s44, {16384-1024}
        buffer_load_dwordx4 v14, s[20:23], s44 offen offset:2048 {polw} lds
        s_add_u32 s44, s44, {16384-1024}
        buffer_load_dwordx4 v14, s[20:23], s44 offen offset:3072 {polw} lds
        s_mov_b32 s46, 4
        s_branch L_rl_done
        L_rl_notwo:
        s_mov_b32 s46, 0
        L_rl_done:
        ''')
        a(f'''
        ds_read_b128 v[20:23], v9
        ds_read_b128 v[24:27], v9 offset:64
        ds_read_b128 v[28:31], v9 offset:128
        ds_read_b128 v[32:35], v9 offset:192
        s_waitcnt lgkmcnt(0)
        v_mfma_f32_16x16x32_bf16 v[40:43], v[16:19], v[20:23], 0
        v_mfma_f32_16x16x32_bf16 v[40:43], v[48:51], v[24:27], v[40:43]
        v_mfma_f32_16x16x32_bf16 v[40:43], v[52:55], v[28:31], v[40:43]
        v_mfma_f32_16x16x32_bf16 v[40:43], v[56:59], v[32:35], v[40:43]
        s_mov_b32 s7, {SCALE}
        s_nop 6
        v_cvt_pk_bf16_f32 v44, v40, v41
        v_cvt_pk_bf16_f32 v45, v42, v43
        v_lshlrev_b32 v40, 16, v44
        v_and_b32 v41, 0xffff0000, v44
        v_lshlrev_b32 v42, 16, v45
        v_and_b32 v43, 0xffff0000, v45
        v_mul_f32 v40, s7, v40
        v_mul_f32 v41, s7, v41
        v_mul_f32 v42, s7, v42
        v_mul_f32 v43, s7, v43
        v_cvt_pk_bf16_f32 v44, v40, v41
        v_cvt_pk_bf16_f32 v45, v42, v43
        v_lshlrev_b32 v40, 16, v44
        v_and_b32 v41, 0xffff0000, v44
        v_lshlrev_b32 v42, 16, v45
        v_and_b32 v43, 0xffff0000, v45
        v_max_f32 v44, v40, v41
        v_max3_f32 v44, v42, v43, v44
        ''')
        self.rows_reduce('v44', 'v45', 'max')
        a(f'''
        s_mov_b64 exec, 0xf
        ds_write_b32 v11, v44
        s_mov_b64 exec, -1
        s_waitcnt lgkmcnt(0)
        s_barrier
        ds_read_b128 v[20:23], v10
        ds_read_b128 v[24:27], v10 offset:16
        v_lshrrev_b32 v28, 1, v0               ; P write address pieces
        s_lshr_b32 s7, s3, 1
        s_lshl_b32 s7, s7, 6                   ; u*64 bytes
        s_and_b32 s44, s3, 1
        s_lshl_b32 s44, s44, 3                 ; (w&1)*8 bytes
        s_add_u32 s7, s7, s44
        s_add_u32 s7, s7, {L_P}
        v_lshlrev_b32 v28, 8, v8
        v_lshl_or_b32 v28, v4, 4, v28          ; head*256 + q*16
        v_add_u32 v28, s7, v28
        s_mov_b32 s7, {LOG2E}
        s_waitcnt lgkmcnt(0)
        v_max3_f32 v20, v20, v21, v22
        v_max3_f32 v24, v24, v25, v26
        v_max3_f32 v20, v20, v23, v27
        v_max_f32 v20, v20, v24                ; M
        v_sub_f32 v40, v40, v20
        v_sub_f32 v41, v41, v20
        v_sub_f32 v42, v42, v20
        v_sub_f32 v43, v43, v20
        v_mul_f32 v40, s7, v40
        v_mul_f32 v41, s7, v41
        v_mul_f32 v42, s7, v42
        v_mul_f32 v43, s7, v43
        v_exp_f32 v40, v40
        v_exp_f32 v41, v41
        v_exp_f32 v42, v42
        v_exp_f32 v43, v43
        s_nop 0
        v_cvt_pk_bf16_f32 v46, v40, v41
        v_cvt_pk_bf16_f32 v47, v42, v43
        v_add_f32 v44, v40, v41
        v_add_f32 v45, v42, v43
        v_add_f32 v44, v44, v45
        s_mov_b64 exec, s[48:49]
        ds_write_b64 v28, v[46:47]
        s_mov_b64 exec, -1
        ''')
        self.rows_reduce('v44', 'v45', 'add')
        a(f'''
        s_mov_b64 exec, 0xf
        ds_write_b32 v11, v44 offset:{L_L-L_M}
        s_mov_b64 exec, -1
        ; V tr-read base address
        v_bfe_u32 v28, v0, 2, 4
        v_and_b32 v29, 7, v28
        v_lshlrev_b32 v29, 1, v29              ; 2*(key&7)
        v_bfe_u32 v30, v0, 1, 1                ; c/2
        s_lshl_b32 s7, s3, 1
        v_add_u32 v30, s7, v30                 ; 2w + c/2
        v_xor_b32 v30, v30, v29
        v_lshlrev_b32 v30, 4, v30
        v_lshl_or_b32 v30, v28, 8, v30
        v_and_b32 v29, 1, v0
        v_lshl_or_b32 v30, v29, 3, v30
        v_add_u32 v30, {L_V}, v30
        v_lshlrev_b32 v31, 8, v8
        v_lshl_or_b32 v31, v4, 4, v31
        v_add_u32 v31, {L_P}, v31
        s_cmp_eq_u32 s46, 0
        s_cbranch_scc1 L_w0
        s_waitcnt vmcnt(4)
        s_branch L_w1
        L_w0:
        s_waitcnt vmcnt(0)
        L_w1:
        s_waitcnt lgkmcnt(0)
        ''')
        self.stamp(7)
        a('s_barrier                              ; B4 : P, l, V ready')
        self.stamp(8)
        for u in range(4):
            a(f'ds_read_b128 v[{32+4*u}:{35+4*u}], v31 offset:{u*64}')
            a(f'ds_read_b64_tr_b16 v[{48+4*u}:{49+4*u}], v30 offset:{u*8192}')
            a(f'ds_read_b64_tr_b16 v[{50+4*u}:{51+4*u}], v30 offset:{u*8192+4096}')
        for u in range(4):
            a(f's_waitcnt lgkmcnt({3*(3-u)})') if not self.diag else (a('s_waitcnt lgkmcnt(0)') if u == 0 else None)
            c = '0' if u == 0 else 'v[20:23]'
            a(f'v_mfma_f32_16x16x32_bf16 v[20:23], v[{32+4*u}:{35+4*u}], v[{48+4*u}:{51+4*u}], {c}')
        a(f'''
        v_cmp_eq_u32 s[44:45], 1, v4
        v_cmp_eq_u32 s[46:47], 2, v4
        v_cmp_eq_u32 vcc, 3, v4
        v_lshlrev_b32 v24, 8, v4               ; head*256
        v_lshlrev_b32 v25, 1, v3
        v_add_u32 v24, v24, v25
        s_lshl_b32 s7, s3, 5
        s_lshl_b32 s50, s2, 0
        s_lshl_b32 s50, s4, 5
        s_add_u32 s50, s50, s5
        s_lshl_b32 s50, s50, 11                ; (g*32+s)*2048
        s_add_u32 s51, s50, {WS_OB}
        s_add_u32 s7, s7, s51
        v_cndmask_b32 v20, v20, v21, s[44:45]
        v_cndmask_b32 v20, v20, v22, s[46:47]
        v_cndmask_b32 v20, v20, v23, vcc
        s_nop 1
        v_mov_b32_dpp v21, v20 quad_perm:[1,0,3,2] row_mask:0xf bank_mask:0xf
        s_nop 0
        v_cvt_pk_bf16_f32 v20, v20, v21
        v_min_u32 v20, -2, v20
        s_mov_b32 exec_lo, 0x55555555
        s_mov_b32 exec_hi, 0x55555555
        buffer_store_dword v20, v24, s[28:31], s7 offen sc1
        s_mov_b64 exec, -1
        ''')
        self.stamp(9)
        a('''
        s_cmp_lt_u32 s5, 16
        s_cbranch_scc1 L_wo
        s_cmp_lt_u32 s5, 30
        s_cbranch_scc1 L_mlp
        s_branch L_fin
        ''')
        self.role_wo()
        self.role_mlp()
        self.role_fin()
        self.comm()
        a('L_exit:')
        a('s_endpgm')
        return wrap(a.text(), 256, 576, LDS_BYTES, 128, sgpr=100)

    def tag_insert(self, regs, tmp_s):
        a = self.a
        for k, r in enumerate(regs):
            a(f's_bfe_u32 {tmp_s}, s42, {(8 << 16) | (8 * k)}')
            a(f'v_and_b32 {r}, 0xffffff00, {r}')
            a(f'v_or_b32 {r}, {tmp_s}, {r}')
    def tag_check(self, granules, t0, t1, first=True):
        a = self.a
        for i, b in enumerate(granules):
            a(f'v_perm_b32 {t0}, v{b+1}, v{b}, s53')
            a(f'v_perm_b32 {t1}, v{b+3}, v{b+2}, s54')
            a(f'v_or_b32 {t0}, {t0}, {t1}')
            if i == 0:
                a(f'v_cmp_ne_u32 vcc, s42, {t0}')
            else:
                a(f'v_cmp_ne_u32 s[44:45], s42, {t0}')
                a('s_nop 0')
                a('s_or_b64 vcc, vcc, s[44:45]')
    def tag_consts(self):
        self.a('s_mov_b32 s53, 0x0c0c0400')
        self.a('s_mov_b32 s54, 0x04000c0c')

    def role_wo(self):
        a = self.a
        a('L_wo:')
        a(f'''
        v_and_b32 v8, 31, v0
        v_lshrrev_b32 v9, 5, v0
        v_lshlrev_b32 v10, 11, v8              ; c*2048
        v_lshl_or_b32 v11, v9, 4, v10          ; + kh*16
        s_lshl_b32 s7, s4, 16                  ; g*32*2048
        s_add_u32 s7, s7, {WS_OB}
        s_lshr_b32 s44, s3, 1
        s_lshl_b32 s45, s44, 8                 ; h*256
        s_and_b32 s46, s3, 1
        s_lshl_b32 s46, s46, 7                 ; dhalf*128
        s_add_u32 s45, s45, s46
        s_add_u32 s55, s7, s45
        s_lshl_b32 s44, s44, 3                 ; h*8
        s_add_u32 s56, s7, s44
        s_add_u32 s56, s56, 1024
        v_bfe_u32 v12, v0, 4, 1                ; colhalf
        v_bfe_u32 v13, v0, 2, 2                ; r
        v_and_b32 v14, 3, v0                   ; c
        v_lshlrev_b32 v15, 9, v9
        v_lshl_or_b32 v15, v13, 6, v15         ; + r*64
        v_lshl_or_b32 v15, v12, 5, v15         ; + colhalf*32
        v_lshl_or_b32 v15, v14, 3, v15         ; + c*8
        v_add_u32 v15, s39, v15
        s_waitcnt vmcnt(0)
        ''')
        for st in range(4):
            a(f'ds_read_b64_tr_b16 v[{48+4*st}:{49+4*st}], v15 offset:{st*1024}')
            a(f'ds_read_b64_tr_b16 v[{50+4*st}:{51+4*st}], v15 offset:{st*1024+256}')
        self.stamp(10)
        self.poll_head('L_wo_p1')
        a(f'''
        buffer_load_dwordx2 v[16:17], v10, s[28:31], s56 offen sc1
        buffer_load_dwordx4 v[32:35], v11, s[28:31], s55 offen sc1
        buffer_load_dwordx4 v[36:39], v11, s[28:31], s55 offen offset:32 sc1
        buffer_load_dwordx4 v[40:43], v11, s[28:31], s55 offen offset:64 sc1
        buffer_load_dwordx4 v[44:47], v11, s[28:31], s55 offen offset:96 sc1
        s_waitcnt vmcnt(0)
        v_max3_u32 v18, v16, v17, v32
        v_max3_u32 v19, v33, v34, v35
        v_max3_u32 v18, v18, v36, v37
        v_max3_u32 v19, v19, v38, v39
        v_max3_u32 v18, v18, v40, v41
        v_max3_u32 v19, v19, v42, v43
        v_max3_u32 v18, v18, v44, v45
        v_max3_u32 v19, v19, v46, v47
        v_max_u32 v18, v18, v19
        v_cmp_eq_u32 vcc, -1, v18
        ''')
        self.poll_tail('L_wo_p1')
        self.stamp(11)
        a(f'''
        s_waitcnt lgkmcnt(0)
        v_mfma_f32_32x32x16_bf16 v[64:79], v[32:35], v[48:51], 0
        v_mfma_f32_32x32x16_bf16 v[64:79], v[36:39], v[52:55], v[64:79]
        v_mfma_f32_32x32x16_bf16 v[64:79], v[40:43], v[56:59], v[64:79]
        v_mfma_f32_32x32x16_bf16 v[64:79], v[44:47], v[60:63], v[64:79]
        v_mov_b32 v18, v16
        ''')
        for r in (8, 4, 2, 1):
            self.nop(2)
            a(f'v_max_f32_dpp v18, v18, v18 row_ror:{r} row_mask:0xf bank_mask:0xf')
        a('v_mov_b32 v19, v18')
        self.nop(2)
        a('v_permlane16_swap_b32 v18, v19')
        self.nop(1)
        a(f'''
        v_max_f32 v18, v18, v19
        v_sub_f32 v16, v16, v18
        v_mul_f32 v16, {LOG2E}, v16
        v_exp_f32 v16, v16
        s_nop 0
        v_mul_f32 v17, v16, v17
        ''')
        for r in (8, 4, 2, 1):
            self.nop(2)
            a(f'v_add_f32_dpp v17, v17, v17 row_ror:{r} row_mask:0xf bank_mask:0xf')
        a('v_mov_b32 v19, v17')
        self.nop(2)
        a('v_permlane16_swap_b32 v17, v19')
        self.nop(1)
        a(f'''
        v_add_f32 v17, v17, v19
        v_rcp_f32 v17, v17
        s_nop 0
        v_mul_f32 v16, v16, v17
        s_lshl_b32 s7, s3, 7
        s_add_u32 s7, s7, {L_W}
        v_lshlrev_b32 v18, 2, v8
        v_add_u32 v18, s7, v18
        v_lshlrev_b32 v19, 4, v9
        v_add_u32 v19, s7, v19                 ; L_W + w*128 + half*16
        s_mov_b32 exec_hi, 0
        ds_write_b32 v18, v16
        s_mov_b64 exec, -1
        s_waitcnt lgkmcnt(0)
        ds_read_b128 v[80:83], v19
        ds_read_b128 v[84:87], v19 offset:32
        ds_read_b128 v[88:91], v19 offset:64
        ds_read_b128 v[92:95], v19 offset:96
        s_waitcnt lgkmcnt(0)
        v_mul_f32 v20, v64, v80
        v_mul_f32 v21, v65, v81
        v_mul_f32 v22, v66, v82
        v_mul_f32 v23, v67, v83
        ''')
        for r in range(4, 16):
            a(f'v_fmac_f32 v{20+(r&3)}, v{64+r}, v{80+r}')
        a('''
        v_add_f32 v20, v20, v21
        v_add_f32 v22, v22, v23
        v_add_f32 v20, v20, v22
        v_mov_b32 v21, v20
        s_nop 1
        v_permlane32_swap_b32 v20, v21
        s_nop 0
        v_add_f32 v20, v20, v21
        ''')
        a(f'''
        s_lshl_b32 s7, s3, 7
        s_add_u32 s7, s7, {L_OP}
        v_lshlrev_b32 v18, 2, v8
        v_add_u32 v18, s7, v18
        s_mov_b32 exec_hi, 0
        ds_write_b32 v18, v20
        s_mov_b64 exec, -1
        s_waitcnt lgkmcnt(0)
        s_barrier
        s_cmp_lg_u32 s3, 0
        s_cbranch_scc1 L_wo_end
        v_and_b32 v18, 7, v0
        v_lshlrev_b32 v18, 4, v18              ; quad*16
        v_add_u32 v19, {L_OP}, v18
        ''')
        for w in range(8):
            a(f'ds_read_b128 v[{32+4*w}:{35+4*w}], v19 offset:{w*128}')
        a(f'''
        v_lshrrev_b32 v20, 3, v0
        v_lshlrev_b32 v20, 14, v20
        v_add_u32 v20, v20, v18
        s_lshl_b32 s7, s4, 11
        s_lshl_b32 s44, s5, 7
        s_add_u32 s7, s7, s44
        s_add_u32 s55, s7, {WS_H3}
        s_waitcnt lgkmcnt(0)
        ''')
        for k in range(4):
            a(f'v_add_f32 v{32+k}, v{32+k}, v{36+k}')
            a(f'v_add_f32 v{40+k}, v{40+k}, v{44+k}')
            a(f'v_add_f32 v{48+k}, v{48+k}, v{52+k}')
            a(f'v_add_f32 v{56+k}, v{56+k}, v{60+k}')
        for k in range(4):
            a(f'v_add_f32 v{32+k}, v{32+k}, v{40+k}')
            a(f'v_add_f32 v{48+k}, v{48+k}, v{56+k}')
        for k in range(4):
            a(f'v_add_f32 v{32+k}, v{32+k}, v{48+k}')
        self.tag_insert(['v32', 'v33', 'v34', 'v35'], 's7')
        a('buffer_store_dwordx4 v[32:35], v20, s[28:31], s55 offen sc1')
        self.stamp(12)
        a('L_wo_end:')
        self.stamp_flush('wo')
        a('s_endpgm')

    def gather_h(self, lab, colbase_sgpr):
        a = self.a
        a(f'''
        v_lshlrev_b32 v8, 11, v4               ; pq*2048
        v_lshl_or_b32 v8, v3, 4, v8            ; + cq*16
        s_lshl_b32 s7, s4, 14                  ; x*8*2048
        s_add_u32 s7, s7, {WS_H3}
        s_add_u32 s55, s7, {colbase_sgpr}
        s_add_u32 s56, s55, 8192
        ''')
        self.tag_consts()
        self.stamp(10)
        self.poll_head(lab)
        a(f'''
        buffer_load_dwordx4 v[32:35], v8, s[28:31], s55 offen sc1
        buffer_load_dwordx4 v[36:39], v8, s[28:31], s56 offen sc1
        s_waitcnt vmcnt(0)
        ''')
        self.tag_check([32, 36], 'v40', 'v41')
        self.poll_tail(lab)
        self.stamp(11)
        for k in range(8):
            a(f'v_and_b32 v{32+k}, 0xffffff00, v{32+k}')
        for k in range(4):
            a(f'v_add_f32 v{20+k}, v{32+k}, v{36+k}')
        for k in range(4):
            a(f'v_mov_b32 v{32+k}, v{20+k}')
        self.nop(1)
        for k in range(4):
            a(f'v_permlane16_swap_b32 v{20+k}, v{32+k}')
        self.nop(1)
        for k in range(4):
            a(f'v_add_f32 v{20+k}, v{20+k}, v{32+k}')
        for k in range(4):
            a(f'v_mov_b32 v{32+k}, v{20+k}')
        self.nop(1)
        for k in range(4):
            a(f'v_permlane32_swap_b32 v{20+k}, v{32+k}')
        self.nop(1)
        for k in range(4):
            a(f'v_add_f32 v{20+k}, v{20+k}, v{32+k}')
        a('''
        v_cvt_pk_bf16_f32 v24, v20, v21
        v_cvt_pk_bf16_f32 v25, v22, v23
        v_lshlrev_b32 v20, 16, v24
        v_and_b32 v21, 0xffff0000, v24
        v_lshlrev_b32 v22, 16, v25
        v_and_b32 v23, 0xffff0000, v25
        v_lshlrev_b32 v32, 16, v18
        v_and_b32 v33, 0xffff0000, v18
        v_lshlrev_b32 v34, 16, v19
        v_and_b32 v35, 0xffff0000, v19
        v_add_f32 v20, v20, v32
        v_add_f32 v21, v21, v33
        v_add_f32 v22, v22, v34
        v_add_f32 v23, v23, v35
        v_cvt_pk_bf16_f32 v24, v20, v21
        v_cvt_pk_bf16_f32 v25, v22, v23
        v_lshlrev_b32 v20, 16, v24
        v_and_b32 v21, 0xffff0000, v24
        v_lshlrev_b32 v22, 16, v25
        v_and_b32 v23, 0xffff0000, v25
        ''')

    def role_mlp(self):
        a = self.a; polw = self.o['polw']
        a('L_mlp:')
        a(f'''
        s_mul_i32 s57, s4, 14
        s_add_u32 s57, s57, s5
        s_sub_u32 s57, s57, 16                 ; p
        v_lshrrev_b32 v14, 1, v0
        s_mov_b32 s7, 3584
        v_mul_lo_u32 v14, v14, s7
        v_and_b32 v15, 1, v0
        v_lshl_or_b32 v15, v15, 4, 0
        v_add_u32 v14, v14, v15
        s_mul_i32 s44, s3, {64*3584}
        s_lshl_b32 s45, s57, 5
        s_add_u32 s44, s44, s45
        s_mov_b32 m0, s39
        s_add_u32 s45, s44, {32*3584-1024}
        buffer_load_dwordx4 v14, s[20:23], s44 offen {polw} lds
        buffer_load_dwordx4 v14, s[20:23], s45 offen offset:1024 {polw} lds
        v_lshlrev_b32 v15, 12, v4
        v_lshl_or_b32 v15, v3, 3, v15          ; + j*8
        s_lshl_b32 s44, s57, 14                ; 16p*1024
        s_lshl_b32 s45, s3, 7                  ; 64w*2
        s_add_u32 s44, s44, s45
        buffer_load_dwordx2 v[48:49], v15, s[24:27], s44 offen {polw}
        buffer_load_dwordx2 v[50:51], v15, s[24:27], s44 offen offset:1024 {polw}
        buffer_load_dwordx2 v[52:53], v15, s[24:27], s44 offen offset:2048 {polw}
        buffer_load_dwordx2 v[54:55], v15, s[24:27], s44 offen offset:3072 {polw}
        v_lshlrev_b32 v16, 3, v3
        s_lshl_b32 s45, s3, 7
        v_add_u32 v16, s45, v16
        global_load_dwordx2 v[18:19], v16, s[32:33]
        v_lshlrev_b32 v12, 3, v0
        v_add_u32 v12, s39, v12
        s_waitcnt vmcnt(5)
        ds_read_b64_tr_b16 v[56:57], v12
        ds_read_b64_tr_b16 v[58:59], v12 offset:512
        ds_read_b64_tr_b16 v[60:61], v12 offset:1024
        ds_read_b64_tr_b16 v[62:63], v12 offset:1536
        v_mov_b32 v64, 0x3f803f80
        v_mov_b32 v65, 0x3f803f80
        v_mov_b32 v66, 0x3f803f80
        v_mov_b32 v67, 0x3f803f80
        s_waitcnt lgkmcnt(0)
        v_mfma_f32_16x16x32_bf16 v[68:71], v[64:67], v[56:59], 0
        v_mfma_f32_16x16x32_bf16 v[68:71], v[64:67], v[60:63], v[68:71]
        s_lshl_b32 s7, s3, 6
        s_add_u32 s7, s7, {L_CS}
        v_lshlrev_b32 v13, 2, v0
        v_add_u32 v13, s7, v13
        s_mov_b64 exec, 0xffff
        s_nop 4
        ds_write_b32 v13, v68
        s_mov_b64 exec, -1
        s_waitcnt vmcnt(0)
        s_mov_b32 s44, 0x05040100
        s_mov_b32 s45, 0x07060302
        v_perm_b32 v72, v50, v48, s44
        v_perm_b32 v73, v54, v52, s44
        v_perm_b32 v74, v50, v48, s45          ; t=1
        v_perm_b32 v75, v54, v52, s45
        v_perm_b32 v76, v51, v49, s44          ; t=2
        v_perm_b32 v77, v55, v53, s44
        v_perm_b32 v78, v51, v49, s45          ; t=3
        v_perm_b32 v79, v55, v53, s45
        s_waitcnt lgkmcnt(0)
        s_barrier
        v_lshlrev_b32 v13, 4, v4
        v_add_u32 v13, {L_CS}, v13
        ''')
        for w in range(8):
            a(f'ds_read_b128 v[{80+4*w}:{83+4*w}], v13 offset:{w*64}')
        a('s_waitcnt lgkmcnt(0)')
        for k in range(4):
            a(f'v_add_f32 v{80+k}, v{80+k}, v{84+k}')
            a(f'v_add_f32 v{88+k}, v{88+k}, v{92+k}')
            a(f'v_add_f32 v{96+k}, v{96+k}, v{100+k}')
            a(f'v_add_f32 v{104+k}, v{104+k}, v{108+k}')
        for k in range(4):
            a(f'v_add_f32 v{80+k}, v{80+k}, v{88+k}')
            a(f'v_add_f32 v{96+k}, v{96+k}, v{104+k}')
        for k in range(4):
            a(f'v_add_f32 v{80+k}, v{80+k}, v{96+k}')
        a('s_lshl_b32 s58, s3, 8')
        self.gather_h('L_mlp_p', 's58')
        a(f'''
        v_add_f32 v26, v20, v21
        v_add_f32 v27, v22, v23
        v_add_f32 v26, v26, v27
        v_mul_f32 v27, v20, v20
        v_fmac_f32 v27, v21, v21
        v_fmac_f32 v27, v22, v22
        v_fmac_f32 v27, v23, v23
        s_lshl_b32 s7, s3, 7
        s_add_u32 s7, s7, {L_LN}
        v_lshlrev_b32 v28, 3, v3
        v_add_u32 v28, s7, v28
        s_mov_b64 exec, 0xffff
        ds_write_b64 v28, v[24:25]
        s_mov_b64 exec, -1
        v_lshlrev_b32 v29, 3, v4
        v_add_u32 v29, s7, v29                 ; + kq*8
        ''')
        for r in (8, 4, 2, 1):
            a(f'v_add_f32_dpp v26, v26, v26 row_ror:{r} row_mask:0xf bank_mask:0xf')
            a(f'v_add_f32_dpp v27, v27, v27 row_ror:{r} row_mask:0xf bank_mask:0xf')
            self.nop(1)
        a(f'''
        s_waitcnt lgkmcnt(0)
        ds_read2_b64 v[32:35], v29 offset0:0 offset1:4
        ds_read2_b64 v[36:39], v29 offset0:8 offset1:12
        s_lshl_b32 s7, s3, 3
        s_add_u32 s7, s7, {L_ST}
        v_mov_b32 v30, s7
        s_mov_b64 exec, 1
        ds_write_b64 v30, v[26:27]
        s_mov_b64 exec, -1
        s_waitcnt lgkmcnt(0)
        v_mfma_f32_16x16x32_bf16 v[40:43], v[32:35], v[56:59], 0
        v_mfma_f32_16x16x32_bf16 v[40:43], v[36:39], v[60:63], v[40:43]
        s_lshl_b32 s7, s3, 6
        s_add_u32 s7, s7, {L_QP}
        v_lshlrev_b32 v13, 2, v0
        v_add_u32 v13, s7, v13
        s_mov_b64 exec, 0xffff
        s_nop 4
        ds_write_b32 v13, v40
        s_mov_b64 exec, -1
        s_waitcnt lgkmcnt(0)
        s_barrier
        v_lshlrev_b32 v13, 4, v4
        v_add_u32 v13, {L_QP}, v13
        v_mov_b32 v14, {L_ST}
        ''')
        for w in range(8):
            a(f'ds_read_b128 v[{84+4*w}:{87+4*w}], v13 offset:{w*64}')
        for i in range(4):
            a(f'ds_read_b128 v[{32+4*i}:{35+4*i}], v14 offset:{i*16}')
        a('s_waitcnt lgkmcnt(0)')
        a('''
        v_add_f32 v32, v32, v34
        v_add_f32 v33, v33, v35
        v_add_f32 v36, v36, v38
        v_add_f32 v37, v37, v39
        v_add_f32 v40, v40, v42
        v_add_f32 v41, v41, v43
        v_add_f32 v44, v44, v46
        v_add_f32 v45, v45, v47
        v_add_f32 v32, v32, v36
        v_add_f32 v33, v33, v37
        v_add_f32 v40, v40, v44
        v_add_f32 v41, v41, v45
        v_add_f32 v32, v32, v40
        v_add_f32 v33, v33, v41
        v_mul_f32 v32, 0x3b000000, v32         ; mean
        v_mul_f32 v33, 0x3b000000, v33         ; E[h^2]
        v_fma_f32 v33, -v32, v32, v33          ; var
        v_max_f32 v33, 0, v33
        v_add_f32 v33, 0x3727c5ac, v33
        v_rsq_f32 v33, v33
        ''')
        for k in range(4):
            a(f'v_add_f32 v{84+k}, v{84+k}, v{88+k}')
            a(f'v_add_f32 v{92+k}, v{92+k}, v{96+k}')
            a(f'v_add_f32 v{100+k}, v{100+k}, v{104+k}')
            a(f'v_add_f32 v{108+k}, v{108+k}, v{112+k}')
        for k in range(4):
            a(f'v_add_f32 v{84+k}, v{84+k}, v{92+k}')
            a(f'v_add_f32 v{100+k}, v{100+k}, v{108+k}')
        for k in range(4):
            a(f'v_add_f32 v{84+k}, v{84+k}, v{100+k}')
        for k in range(4):
            a(f'v_fma_f32 v{84+k}, -v32, v{80+k}, v{84+k}')
        for k in range(4):
            a(f'v_mul_f32 v{84+k}, v{84+k}, v33')
        a('''
        v_cvt_pk_bf16_f32 v34, v84, v85
        v_cvt_pk_bf16_f32 v35, v86, v87
        v_lshlrev_b32 v84, 16, v34
        v_and_b32 v85, 0xffff0000, v34
        v_lshlrev_b32 v86, 16, v35
        v_and_b32 v87, 0xffff0000, v35
        ''')
        for k in range(4):
            a(f'v_mul_f32 v{88+k}, 0xbfb8aa3b, v{84+k}')
        for k in range(4):
            a(f'v_exp_f32 v{88+k}, v{88+k}')
        a('s_nop 0')
        for k in range(4):
            a(f'v_add_f32 v{88+k}, 1.0, v{88+k}')
        for k in range(4):
            a(f'v_rcp_f32 v{88+k}, v{88+k}')
        a('s_nop 0')
        for k in range(4):
            a(f'v_mul_f32 v{84+k}, v{84+k}, v{88+k}')
        a(f'''
        v_cvt_pk_bf16_f32 v34, v84, v85
        v_cvt_pk_bf16_f32 v35, v86, v87
        s_nop 1
        v_mfma_f32_16x16x16_bf16 v[36:39], v[34:35], v[72:73], 0
        v_mfma_f32_16x16x16_bf16 v[40:43], v[34:35], v[74:75], 0
        v_mfma_f32_16x16x16_bf16 v[44:47], v[34:35], v[76:77], 0
        v_mfma_f32_16x16x16_bf16 v[48:51], v[34:35], v[78:79], 0
        v_lshlrev_b32 v13, 4, v3               ; j*16
        s_lshl_b32 s7, s57, 11
        s_lshl_b32 s44, s3, 8
        s_add_u32 s7, s7, s44
        s_add_u32 s55, s7, {WS_H4}
        s_nop 4
        v_mov_b32 v52, v36
        v_mov_b32 v53, v40
        v_mov_b32 v54, v44
        v_mov_b32 v55, v48
        ''')
        self.tag_insert(['v52', 'v53', 'v54', 'v55'], 's7')
        a('''
        s_mov_b64 exec, 0xffff
        buffer_store_dwordx4 v[52:55], v13, s[28:31], s55 offen sc1
        s_mov_b64 exec, -1
        ''')
        self.stamp(12)
        self.stamp_flush('mlp')
        a('s_endpgm')

    def role_fin(self):
        a = self.a
        a('L_fin:')
        a(f'''
        s_lshl_b32 s57, s4, 1
        s_add_u32 s57, s57, s5
        s_sub_u32 s57, s57, 30                 ; f
        v_and_b32 v16, 7, v3
        v_lshlrev_b32 v16, 3, v16
        s_lshl_b32 s45, s57, 6
        v_add_u32 v16, s45, v16
        global_load_dwordx2 v[18:19], v16, s[32:33]
        s_waitcnt vmcnt(0)
        s_cmp_lg_u32 s3, 0
        s_cbranch_scc1 L_fin_h4
        ''')
        a('v_mov_b32 v5, v3')
        a('v_and_b32 v3, 7, v3')
        a('s_lshl_b32 s58, s57, 7')
        self.gather_h('L_fin_p', 's58')
        a('v_mov_b32 v3, v5')
        a('L_fin_h4:')
        self.tag_consts()
        a(f'''
        v_and_b32 v8, 7, v0
        v_lshrrev_b32 v9, 3, v0
        v_lshlrev_b32 v10, 11, v9
        v_lshl_or_b32 v10, v8, 4, v10
        s_lshl_b32 s7, s3, 14                  ; w*8*2048
        s_lshl_b32 s44, s57, 7                 ; f*128
        s_add_u32 s7, s7, s44
        s_add_u32 s55, s7, {WS_H4}
        s_add_u32 s56, s55, {64*2048}
        s_cmp_lt_u32 s3, 6
        s_cselect_b32 s56, s56, s55
        s_cselect_b32 s59, 1.0, 0
        ''')
        self.poll_head('L_fin_p4')
        a('''
        buffer_load_dwordx4 v[32:35], v10, s[28:31], s55 offen sc1
        buffer_load_dwordx4 v[36:39], v10, s[28:31], s56 offen sc1
        s_waitcnt vmcnt(0)
        ''')
        self.tag_check([32, 36], 'v40', 'v41')
        self.poll_tail('L_fin_p4')
        self.stamp(12)
        for k in range(8):
            a(f'v_and_b32 v{32+k}, 0xffffff00, v{32+k}')
        for k in range(4):
            a(f'v_fma_f32 v{32+k}, v{36+k}, s59, v{32+k}')
        self.nop(1)
        for k in range(4):
            a(f'v_add_f32_dpp v{32+k}, v{32+k}, v{32+k} row_ror:8 row_mask:0xf bank_mask:0xf')
        for k in range(4):
            a(f'v_mov_b32 v{36+k}, v{32+k}')
        self.nop(1)
        for k in range(4):
            a(f'v_permlane16_swap_b32 v{32+k}, v{36+k}')
        self.nop(1)
        for k in range(4):
            a(f'v_add_f32 v{32+k}, v{32+k}, v{36+k}')
        for k in range(4):
            a(f'v_mov_b32 v{36+k}, v{32+k}')
        self.nop(1)
        for k in range(4):
            a(f'v_permlane32_swap_b32 v{32+k}, v{36+k}')
        self.nop(1)
        for k in range(4):
            a(f'v_add_f32 v{32+k}, v{32+k}, v{36+k}')
        a(f'''
        s_lshl_b32 s7, s3, 7
        s_add_u32 s7, s7, {L_OP}
        v_lshlrev_b32 v11, 4, v8
        v_add_u32 v12, s7, v11
        s_mov_b64 exec, 0xff
        ds_write_b128 v12, v[32:35]
        s_mov_b64 exec, -1
        s_waitcnt lgkmcnt(0)
        s_barrier
        s_cmp_lg_u32 s3, 0
        s_cbranch_scc1 L_fin_end
        v_add_u32 v12, {L_OP}, v11
        ''')
        for w in range(8):
            a(f'ds_read_b128 v[{32+4*w}:{35+4*w}], v12 offset:{w*128}')
        a('s_waitcnt lgkmcnt(0)')
        for k in range(4):
            a(f'v_add_f32 v{32+k}, v{32+k}, v{36+k}')
            a(f'v_add_f32 v{40+k}, v{40+k}, v{44+k}')
            a(f'v_add_f32 v{48+k}, v{48+k}, v{52+k}')
            a(f'v_add_f32 v{56+k}, v{56+k}, v{60+k}')
        for k in range(4):
            a(f'v_add_f32 v{32+k}, v{32+k}, v{40+k}')
            a(f'v_add_f32 v{48+k}, v{48+k}, v{56+k}')
        for k in range(4):
            a(f'v_add_f32 v{32+k}, v{32+k}, v{48+k}')
        a(f'''
        v_cvt_pk_bf16_f32 v36, v32, v33
        v_cvt_pk_bf16_f32 v37, v34, v35
        v_lshlrev_b32 v32, 16, v36
        v_and_b32 v33, 0xffff0000, v36
        v_lshlrev_b32 v34, 16, v37
        v_and_b32 v35, 0xffff0000, v37
        v_add_f32 v32, v32, v20
        v_add_f32 v33, v33, v21
        v_add_f32 v34, v34, v22
        v_add_f32 v35, v35, v23
        v_cvt_pk_bf16_f32 v36, v32, v33
        v_cvt_pk_bf16_f32 v37, v34, v35
        v_lshlrev_b32 v11, 3, v8
        s_lshl_b32 s7, s57, 6
        v_add_u32 v11, s7, v11
        s_waitcnt lgkmcnt(0)
        s_mov_b64 exec, 0xff
        global_store_dwordx2 v11, v[36:37], s[34:35]
        s_cmp_lg_u32 s57, 0
        s_cbranch_scc1 L_fin_end
        s_add_u32 s7, s43, 1
        v_mov_b32 v12, s7
        v_mov_b32 v13, 0
        s_mov_b64 exec, 1
        buffer_store_dword v12, v13, s[28:31], 0 offen sc1
        L_fin_end:
        s_mov_b64 exec, -1
        ''')
        self.stamp(13)
        self.stamp_flush('fin')
        a('s_endpgm')

    def comm(self):
        a = self.a
        a('L_comm:')
        a(f'''
        s_getreg_b32 s6, hwreg(HW_REG_XCC_ID, 0, 3)
        s_lshl_b32 s50, s4, 5
        s_add_u32 s50, s50, s5                 ; g*32+s
        s_lshl_b32 s51, s50, 11
        s_add_u32 s51, s51, {WS_OB}
        v_lshlrev_b32 v2, 4, v0                ; lane*16
        v_mov_b32 v8, -1
        v_mov_b32 v9, -1
        v_mov_b32 v10, -1
        v_mov_b32 v11, -1
        s_waitcnt lgkmcnt(0)
        s_load_dword s43, s[28:29], 0x0
        buffer_store_dwordx4 v[8:11], v2, s[28:31], s51 offen sc1
        s_mov_b64 exec, 3
        buffer_store_dwordx4 v[8:11], v2, s[28:31], s51 offen offset:1024 sc1
        s_mov_b64 exec, -1
        s_waitcnt lgkmcnt(0)
        s_mul_i32 s42, s43, 0x9e3779b1
        s_add_u32 s42, s42, 0x7f4a7c15
        s_and_b32 s40, s42, 0xfff8             ; tagA
        s_lshr_b32 s41, s42, 16
        s_and_b32 s41, s41, 0xfff8             ; tagB
        ; addresses
        v_and_b32 v12, 3, v0                   ; gq
        v_bfe_u32 v13, v0, 2, 3                ; w' = (lane>>2)&7
        v_lshlrev_b32 v14, 6, v13
        v_lshl_or_b32 v14, v12, 4, v14
        v_add_u32 v14, {L_QP}, v14             ; q partial read address
        v_lshrrev_b32 v15, 2, v0
        v_lshlrev_b32 v15, 7, v15
        v_lshl_or_b32 v15, v12, 4, v15
        s_lshl_b32 s55, s4, 12
        s_add_u32 s55, s55, {WS_Q}
        s_add_u32 s56, s55, 2048
        s_lshl_b32 s7, s5, 7
        s_add_u32 s57, s55, s7
        s_or_b32 s44, s40, s6
        s_or_b32 s45, s41, s6
        v_mov_b32 v16, s44
        v_mov_b32 v17, s45
        v_mov_b32 v18, s40
        v_mov_b32 v19, s41
        s_waitcnt vmcnt(0)
        ''')
        self.stamp(3)
        a(f'''
        s_barrier                              ; B1
        ds_read_b128 v[20:23], v14
        s_waitcnt lgkmcnt(0)
        ''')
        self.stamp(4)
        for r in (4, 8):
            self.nop(1)
            for k in range(4):
                a(f'v_add_f32_dpp v{20+k}, v{20+k}, v{20+k} row_ror:{r} row_mask:0xf bank_mask:0xf')
        for k in range(4):
            a(f'v_mov_b32 v{24+k}, v{20+k}')
        self.nop(1)
        for k in range(4):
            a(f'v_permlane16_swap_b32 v{20+k}, v{24+k}')
        self.nop(1)
        for k in range(4):
            a(f'v_add_f32 v{20+k}, v{20+k}, v{24+k}')
        a(f'''
        v_cvt_pk_bf16_f32 v24, v20, v21
        v_cvt_pk_bf16_f32 v25, v22, v23
        s_mov_b32 s7, 0xffff0000
        v_lshl_or_b32 v20, v24, 16, v16
        v_and_or_b32 v21, v24, s7, v17
        v_lshl_or_b32 v22, v25, 16, v16
        v_and_or_b32 v23, v25, s7, v17
        v_lshlrev_b32 v26, 4, v12
        s_mov_b64 exec, 0xf
        buffer_store_dwordx4 v[20:23], v26, s[28:31], s57 offen sc1
        s_mov_b64 exec, -1
        s_setprio 3
        ''')
        self.stamp(5)
        self.poll_head('L_q_poll')
        a(f'''
        buffer_load_dwordx4 v[28:31], v15, s[28:31], s55 offen sc1
        buffer_load_dwordx4 v[32:35], v15, s[28:31], s56 offen sc1
        s_waitcnt vmcnt(0)
        v_xor_b32 v36, v28, v18
        v_xor_b32 v37, v29, v19
        v_xor_b32 v38, v30, v18
        v_xor_b32 v39, v31, v19
        v_or3_b32 v36, v36, v37, v38
        v_xor_b32 v37, v32, v18
        v_xor_b32 v38, v33, v19
        v_or3_b32 v36, v36, v39, v37
        v_xor_b32 v39, v34, v18
        v_xor_b32 v37, v35, v19
        v_or3_b32 v36, v36, v38, v39
        v_or_b32 v36, v36, v37
        v_and_b32 v36, 0xfff8, v36
        v_cmp_ne_u32 vcc, 0, v36
        ''')
        self.poll_tail('L_q_poll')
        self.stamp(6)
        a(f'''
        s_mov_b32 s7, 0x07060302
        v_perm_b32 v36, v29, v28, s7
        v_perm_b32 v37, v31, v30, s7
        v_perm_b32 v38, v33, v32, s7
        v_perm_b32 v39, v35, v34, s7
        v_lshlrev_b32 v40, 3, v0
        v_add_u32 v40, {L_Q}, v40
        ds_write_b64 v40, v[36:37]
        ds_write_b64 v40, v[38:39] offset:512
        s_waitcnt lgkmcnt(0)
        s_barrier                              ; B2
        s_barrier                              ; B3
        s_barrier                              ; B4
        v_and_b32 v12, 3, v0
        v_lshlrev_b32 v13, 5, v12
        v_add_u32 v13, {L_M}, v13
        ds_read_b128 v[20:23], v13
        ds_read_b128 v[24:27], v13 offset:16
        ds_read_b128 v[28:31], v13 offset:{L_L-L_M}
        ds_read_b128 v[32:35], v13 offset:{L_L-L_M+16}
        v_lshlrev_b32 v14, 3, v12
        s_waitcnt lgkmcnt(0)
        v_max3_f32 v20, v20, v21, v22
        v_max3_f32 v24, v24, v25, v26
        v_max3_f32 v20, v20, v23, v27
        v_max_f32 v20, v20, v24
        v_add_f32 v28, v28, v29
        v_add_f32 v30, v30, v31
        v_add_f32 v32, v32, v33
        v_add_f32 v34, v34, v35
        v_add_f32 v28, v28, v30
        v_add_f32 v32, v32, v34
        v_add_f32 v21, v28, v32
        v_min_u32 v20, -2, v20
        v_min_u32 v21, -2, v21
        s_mov_b64 exec, 0xf
        buffer_store_dwordx2 v[20:21], v14, s[28:31], s51 offen offset:1024 sc1
        s_mov_b64 exec, -1
        ''')
        self.stamp(9)
        self.stamp_flush('comm')
        a('s_endpgm')

if __name__ == "__main__":
    import argparse
    ap = argparse.ArgumentParser()
    ap.add_argument('-o', default='k.s')
    ap.add_argument('--diag', action='store_true')
    ap.add_argument('--opt', action='append', default=[])
    args = ap.parse_args()
    opts = {}
    for kv in args.opt:
        k, v = kv.split('=', 1)
        try: v = int(v)
        except ValueError: pass
        opts[k] = v
    g = Gen(diag=args.diag, opts=opts)
    open(args.o, 'w').write(g.build())
```

```python
import sys
from asmgen import Asm, wrap, NAME

WS_EPOCH = 0
WS_Q     = 4096
WS_OA    = 65536
WS_OB    = WS_OA + 256 * 2048
WS_H3    = WS_OB + 256 * 2048
WS_H4    = WS_H3 + 64 * 2048
WS_END   = WS_H4 + 112 * 2048
WS_DBG   = 16 << 20
STAMP_OFF = 128 << 20

L_R0  = 0
L_V   = 32768
L_LN  = 65536
L_QP  = L_LN + 1024
L_Q   = L_QP + 512
L_M   = L_Q + 1024
L_L   = L_M + 128
L_P   = L_L + 128
L_FLG = L_P + 1024
L_W   = L_FLG + 64
L_OP  = L_W + 1024
L_ST  = L_OP + 1024
L_CS  = L_ST + 64
L_END = L_CS + 512
LDS_BYTES = (L_END + 255) // 256 * 256

LOG2E = 0x3fb8aa3b
SCALE = 0x3db504f3

class Gen:
    def __init__(self, diag=False, dump=False, opts=None):
        self.a = Asm()
        self.diag = diag
        self.dump = dump
        self.o = dict(pol='nt', polwq='nt', polw='nt', useA=False, spin=40000)
        if opts: self.o.update(opts)
        self.nstamp = 0
    def __call__(self, s): self.a(s)
    def nop(self, n):
        if n > 0: self.a(f's_nop {n-1}')
    def stamp(self, k):
        if self.diag:
            self.a(f's_memrealtime s[{64+2*k}:{65+2*k}]')
    def stamp_init(self):
        if self.diag:
            for k in range(16):
                self.a(f's_mov_b64 s[{64+2*k}:{65+2*k}], 0')
    def stamp_flush(self, lab):
        if not self.diag: return
        a = self.a
        if self.o.get('dbgstamps'):
            sel = self.o.get('dbgstamps')
            if sel == 1:
                m = {'wo': {1:3, 2:4, 3:5, 4:6, 5:7, 6:8, 7:9, 8:11, 9:12, 15:1}, 'mlp': {10:11, 11:12}, 'fin': {12:12, 13:13}, 'comm': {14:6}}[lab]
            else:
                m = {'wo': {1:9, 2:10, 3:11, 4:12}, 'mlp': {5:9, 6:13, 7:14, 8:15, 9:10, 10:11, 11:12}, 'fin': {12:11, 13:12, 14:13}, 'comm': {15:9}}[lab]
            sk = a.lab('L_sk')
            a('s_and_b32 s44, s3, 7')
            a('s_cmp_lg_u32 s44, 0')
            a(f's_cbranch_scc1 {sk}')
            a('s_and_b32 s44, s5, 1')
            a('s_cmp_lg_u32 s44, 0')
            a(f's_cbranch_scc1 {sk}')
            a('s_waitcnt lgkmcnt(0)')
            a('s_mov_b64 exec, 1')
            a('s_load_dwordx2 s[44:45], s[0:1], 72')
            a('s_waitcnt lgkmcnt(0)')
            a('s_mov_b32 s46, 256')
            a('s_mov_b32 s47, 0x20000')
            a('v_mov_b32 v1, 0')
            a('s_not_b32 s64, s64')
            a('v_mov_b32 v2, s64')
            a('buffer_atomic_umax v2, v1, s[44:47], 0 offen')
            for idx, k in m.items():
                a(f'v_mov_b32 v3, s{64+2*k}')
                a(f'buffer_atomic_umax v3, v1, s[44:47], 0 offen offset:{4*idx}')
                a('s_nop 1')
            a('s_waitcnt vmcnt(0)')
            a(f'{sk}:')
            return
        a('s_waitcnt lgkmcnt(0)')
        a('s_mov_b64 exec, 1')
        a('s_mul_i32 s44, s2, 9')
        a('s_add_u32 s44, s44, s3')
        a('s_lshl_b32 s44, s44, 7')
        a(f's_add_u32 s44, s44, {STAMP_OFF}')
        a('v_mov_b32 v1, 0')
        for k in range(16):
            a(f'v_mov_b32 v2, s{64+2*k}')
            a(f'v_mov_b32 v3, s{65+2*k}')
            a(f'buffer_store_dwordx2 v[2:3], v1, s[28:31], s44 offen offset:{8*k}')
            a('s_nop 1')
        a('s_waitcnt vmcnt(0)')

    def allreduce64(self, v, tmp, op='add'):
        a = self.a
        ins = 'v_add_f32' if op == 'add' else 'v_max_f32'
        for r in (8, 4, 2, 1):
            self.nop(2)
            a(f'{ins}_dpp {v}, {v}, {v} row_ror:{r} row_mask:0xf bank_mask:0xf')
        self.rows_reduce(v, tmp, op)
    def rows_reduce(self, v, tmp, op='add'):
        a = self.a
        ins = 'v_add_f32' if op == 'add' else 'v_max_f32'
        a(f'v_mov_b32 {tmp}, {v}')
        self.nop(2)
        a(f'v_permlane16_swap_b32 {v}, {tmp}')
        self.nop(1)
        a(f'{ins} {v}, {v}, {tmp}')
        a(f'v_mov_b32 {tmp}, {v}')
        self.nop(2)
        a(f'v_permlane32_swap_b32 {v}, {tmp}')
        self.nop(1)
        a(f'{ins} {v}, {v}, {tmp}')

    def poll_head(self, lab):
        a = self.a
        a(f's_mov_b32 s52, {self.o["spin"]}')
        a(f'{lab}:')
    def poll_tail(self, lab):
        a = self.a
        a(f's_cbranch_vccz {lab}_ok')
        a('s_sub_u32 s52, s52, 1')
        a(f's_cbranch_scc0 {lab}')
        a(f'{lab}_ok:')

    def dbg_store(self, vreg, ndw, off_expr_sgpr_setup, voff, cond=None):
        pass

    def build(self):
        a = self.a; o = self.o
        pol, polwq, polw = o['pol'], o['polwq'], o['polw']
        self.stamp_init_pre = None
        if self.diag: a('s_memrealtime s[64:65]')
        a('''
        s_cmp_ge_u32 s2, 256
        s_cbranch_scc1 L_exit
        s_load_dwordx2 s[16:17], s[0:1], 24
        s_load_dwordx2 s[32:33], s[0:1], 0
        s_load_dwordx2 s[8:9], s[0:1], 8
        s_load_dwordx2 s[12:13], s[0:1], 16
        s_load_dwordx2 s[28:29], s[0:1], 80
        v_lshrrev_b32 v1, 6, v0
        v_and_b32 v0, 63, v0
        s_and_b32 s4, s2, 7
        s_lshr_b32 s5, s2, 3
        v_readfirstlane_b32 s3, v1
        s_mov_b32 s18, 4194304
        s_mov_b32 s19, 0x20000
        s_mov_b32 s10, 67108864
        s_mov_b32 s11, 0x20000
        s_mov_b32 s14, 67108864
        s_mov_b32 s15, 0x20000
        s_mov_b32 s30, 0x10000000
        s_mov_b32 s31, 0x20000
        ''')
        if self.diag:
            for k in range(1, 16): a(f's_mov_b64 s[{64+2*k}:{65+2*k}], 0')
        a('s_cmp_eq_u32 s3, 8')
        a('s_cbranch_scc1 L_comm')
        a(f'''
        v_lshrrev_b32 v1, 1, v0
        v_lshlrev_b32 v1, 13, v1
        v_and_b32 v2, 1, v0
        v_lshl_or_b32 v1, v2, 4, v1
        v_lshlrev_b32 v2, 4, v0                ; v2 = lane*16
        v_and_b32 v3, 15, v0                   ; v3 = lane&15
        v_lshrrev_b32 v4, 4, v0                ; v4 = lane>>4
        v_lshlrev_b32 v5, 8, v3
        v_lshl_or_b32 v5, v4, 4, v5            ; v5 = K voffset
        v_lshlrev_b32 v6, 1, v4
        v_xor_b32 v6, v6, v3
        v_lshlrev_b32 v6, 4, v6
        v_lshl_or_b32 v6, v4, 8, v6
        v_xor_b32 v7, 128, v6
        s_lshl_b32 s37, s3, 19
        s_lshl_b32 s7, s4, 10
        s_add_u32 s37, s37, s7
        s_lshl_b32 s7, s5, 5
        s_add_u32 s37, s37, s7
        s_add_u32 s38, s37, {262144-1024}      ; wq soffset 1 (imm offset 1024 added)
        s_lshl_b32 s36, s4, 23
        s_lshl_b32 s7, s5, 15
        s_add_u32 s36, s36, s7
        s_lshl_b32 s7, s3, 12
        s_add_u32 s36, s36, s7
        s_add_u32 s36, s36, {28672*256}        ; K/V soffset
        s_lshl_b32 s39, s3, 12                 ; w*4096
        s_mov_b32 m0, s39                      ; L_R0 + w*4096
        s_waitcnt lgkmcnt(0)
        global_load_dwordx4 v[8:11], v2, s[32:33]
        buffer_load_dwordx4 v1, s[16:19], s37 offen {polwq} lds
        buffer_load_dwordx4 v1, s[16:19], s38 offen offset:1024 {polwq} lds
        buffer_load_dwordx4 v[16:19], v5, s[8:11], s36 offen {pol}
        ''')
        self.stamp(1)
        a('''
        s_load_dwordx2 s[34:35], s[0:1], 64
        s_load_dword s43, s[28:29], 0x0
        s_load_dwordx2 s[24:25], s[0:1], 56
        s_load_dwordx2 s[20:21], s[0:1], 32
        s_load_dwordx2 s[60:61], s[0:1], 48
        s_mov_b32 s48, 0x000f000f
        s_mov_b32 s49, 0x000f000f
        s_mov_b32 s23, 0x20000
        s_mov_b32 s26, 1835008
        s_mov_b32 s27, 0x20000
        ''')
        a('s_waitcnt vmcnt(3)')
        self.stamp(2)
        for k in range(4):
            a(f'v_lshlrev_b32 v{20+2*k}, 16, v{8+k}')
            a(f'v_and_b32 v{21+2*k}, 0xffff0000, v{8+k}')
        a('''
        v_add_f32 v28, v20, v21
        v_add_f32 v29, v22, v23
        v_add_f32 v30, v24, v25
        v_add_f32 v31, v26, v27
        v_add_f32 v28, v28, v29
        v_add_f32 v30, v30, v31
        v_add_f32 v28, v28, v30
        ''')
        self.allreduce64('v28', 'v29')
        a('v_mul_f32 v28, 0x3b000000, v28        ; mean')
        for k in range(8):
            a(f'v_sub_f32 v{32+k}, v{20+k}, v28')
        a('v_mul_f32 v29, v32, v32')
        for k in range(1, 8):
            a(f'v_fmac_f32 v29, v{32+k}, v{32+k}')
        self.allreduce64('v29', 'v30')
        a('''
        v_mul_f32 v29, 0x3b000000, v29        ; var
        v_cvt_pk_bf16_f32 v30, v28, v29
        v_lshlrev_b32 v28, 16, v30
        v_and_b32 v29, 0xffff0000, v30
        v_add_f32 v29, 0x3727c5ac, v29        ; + 1e-5
        v_cvt_pk_bf16_f32 v29, v29, v29
        v_and_b32 v29, 0xffff0000, v29
        v_sqrt_f32 v29, v29
        s_nop 0
        v_cvt_pk_bf16_f32 v29, v29, v29
        v_and_b32 v29, 0xffff0000, v29
        v_rcp_f32 v30, v29
        ''')
        for k in range(8):
            a(f'v_sub_f32 v{32+k}, v{20+k}, v28')
        for k in range(4):
            a(f'v_cvt_pk_bf16_f32 v{40+k}, v{32+2*k}, v{33+2*k}')
        for k in range(4):
            a(f'v_lshlrev_b32 v{32+2*k}, 16, v{40+k}')
            a(f'v_and_b32 v{33+2*k}, 0xffff0000, v{40+k}')
        for k in range(8):
            a(f'v_mul_f32 v{20+k}, v{32+k}, v30')
        for k in range(8):
            a(f'v_fma_f32 v{40+k}, -v{20+k}, v29, v{32+k}')
        for k in range(8):
            a(f'v_fmac_f32 v{20+k}, v{40+k}, v30')
        for k in range(4):
            a(f'v_cvt_pk_bf16_f32 v{40+k}, v{20+2*k}, v{21+2*k}')
        a(f'''
        v_lshrrev_b32 v28, 3, v0
        v_and_b32 v29, 7, v0
        v_lshlrev_b32 v29, 4, v29
        s_lshl_b32 s7, s3, 7
        s_add_u32 s7, s7, {L_LN}
        v_add_u32 v29, s7, v29
        v_cmp_eq_u32 vcc, s3, v28
        s_and_saveexec_b64 s[44:45], vcc
        ds_write_b128 v29, v[40:43]
        s_mov_b64 exec, s[44:45]
        v_lshlrev_b32 v28, 3, v4
        v_add_u32 v28, s7, v28
        s_waitcnt lgkmcnt(0)
        s_mov_b32 s22, 4194304
        s_cmp_lt_u32 s5, 16
        s_cselect_b32 s20, s20, s60
        s_cselect_b32 s21, s21, s61
        s_cselect_b32 s22, s22, s26
        ds_read2_b64 v[20:23], v28 offset0:0 offset1:4
        ds_read2_b64 v[24:27], v28 offset0:8 offset1:12
        v_lshlrev_b32 v12, 3, v0
        v_add_u32 v12, s39, v12                ; L_R0 + w*4096 + lane*8
        ''')
        a('s_waitcnt vmcnt(1)')
        self.stamp(3)
        a(f'''
        buffer_load_dwordx4 v[48:51], v5, s[8:11], s36 offen offset:64 {pol}
        buffer_load_dwordx4 v[52:55], v5, s[8:11], s36 offen offset:128 {pol}
        ds_read_b64_tr_b16 v[32:33], v12
        ds_read_b64_tr_b16 v[34:35], v12 offset:512
        ds_read_b64_tr_b16 v[36:37], v12 offset:1024
        ds_read_b64_tr_b16 v[38:39], v12 offset:1536
        s_waitcnt lgkmcnt(0)
        v_mfma_f32_16x16x32_bf16 v[40:43], v[20:23], v[32:35], 0
        v_mfma_f32_16x16x32_bf16 v[40:43], v[24:27], v[36:39], v[40:43]
        v_lshlrev_b32 v13, 2, v0
        s_lshl_b32 s7, s3, 6
        s_add_u32 s7, s7, {L_QP}
        v_add_u32 v13, s7, v13
        s_mov_b64 exec, 0xffff
        s_nop 4
        ds_write_b32 v13, v40
        s_mov_b64 exec, -1
        s_waitcnt lgkmcnt(0)
        s_barrier                              ; B1
        ''')
        self.stamp(4)
        a(f'''
        s_add_u32 s7, s39, {L_V}
        s_mov_b32 m0, s7
        s_waitcnt vmcnt(2)
        buffer_load_dwordx4 v[56:59], v5, s[8:11], s36 offen offset:192 {pol}
        s_waitcnt vmcnt(2)
        buffer_load_dwordx4 v6, s[12:15], s36 offen {pol} lds
        s_waitcnt vmcnt(2)
        buffer_load_dwordx4 v7, s[12:15], s36 offen offset:1024 {pol} lds
        s_waitcnt vmcnt(2)
        buffer_load_dwordx4 v6, s[12:15], s36 offen offset:2048 {pol} lds
        s_waitcnt vmcnt(2)
        buffer_load_dwordx4 v7, s[12:15], s36 offen offset:3072 {pol} lds
        ''')
        self.stamp(5)
        a('''
        s_waitcnt lgkmcnt(0)
        s_mul_i32 s42, s43, 0x9e3779b1
        s_add_u32 s42, s42, 0x7f4a7c15
        ''')
        a(f'''
        v_and_b32 v8, 3, v0                    ; head = j&3
        v_lshlrev_b32 v9, 8, v8
        v_lshl_or_b32 v9, v4, 4, v9
        v_add_u32 v9, {L_Q}, v9                ; q frag addr
        v_lshlrev_b32 v10, 5, v8
        v_add_u32 v10, {L_M}, v10              ; L_M + head*32
        s_lshl_b32 s7, s3, 2
        v_add_u32 v11, s7, v10                 ; L_M + head*32 + w*4
        s_barrier                              ; B2 : q ready
        ''')
        self.stamp(6)
        a(f'''
        s_mov_b32 m0, s39
        s_cmp_lt_u32 s5, 16
        s_cbranch_scc0 L_rl_notwo
        v_lshrrev_b32 v14, 2, v0
        v_lshlrev_b32 v14, 10, v14
        v_and_b32 v15, 3, v0
        v_lshl_or_b32 v14, v15, 4, v14
        s_lshl_b32 s44, s4, 19
        s_lshl_b32 s45, s3, 16
        s_add_u32 s44, s44, s45
        s_lshl_b32 s45, s5, 6
        s_add_u32 s44, s44, s45
        buffer_load_dwordx4 v14, s[20:23], s44 offen {polw} lds
        s_add_u32 s44, s44, {16384-1024}
        buffer_load_dwordx4 v14, s[20:23], s44 offen offset:1024 {polw} lds
        s_add_u32 s44, s44, {16384-1024}
        buffer_load_dwordx4 v14, s[20:23], s44 offen offset:2048 {polw} lds
        s_add_u32 s44, s44, {16384-1024}
        buffer_load_dwordx4 v14, s[20:23], s44 offen offset:3072 {polw} lds
        s_mov_b32 s46, 4
        s_branch L_rl_done
        L_rl_notwo:
        s_mov_b32 s46, 0
        L_rl_done:
        ''')
        a(f'''
        ds_read_b128 v[20:23], v9
        ds_read_b128 v[24:27], v9 offset:64
        ds_read_b128 v[28:31], v9 offset:128
        ds_read_b128 v[32:35], v9 offset:192
        s_waitcnt lgkmcnt(0)
        v_mfma_f32_16x16x32_bf16 v[40:43], v[16:19], v[20:23], 0
        v_mfma_f32_16x16x32_bf16 v[40:43], v[48:51], v[24:27], v[40:43]
        v_mfma_f32_16x16x32_bf16 v[40:43], v[52:55], v[28:31], v[40:43]
        v_mfma_f32_16x16x32_bf16 v[40:43], v[56:59], v[32:35], v[40:43]
        s_mov_b32 s7, {SCALE}
        s_nop 6
        v_cvt_pk_bf16_f32 v44, v40, v41
        v_cvt_pk_bf16_f32 v45, v42, v43
        v_lshlrev_b32 v40, 16, v44
        v_and_b32 v41, 0xffff0000, v44
        v_lshlrev_b32 v42, 16, v45
        v_and_b32 v43, 0xffff0000, v45
        v_mul_f32 v40, s7, v40
        v_mul_f32 v41, s7, v41
        v_mul_f32 v42, s7, v42
        v_mul_f32 v43, s7, v43
        v_cvt_pk_bf16_f32 v44, v40, v41
        v_cvt_pk_bf16_f32 v45, v42, v43
        v_lshlrev_b32 v40, 16, v44
        v_and_b32 v41, 0xffff0000, v44
        v_lshlrev_b32 v42, 16, v45
        v_and_b32 v43, 0xffff0000, v45
        v_max_f32 v44, v40, v41
        v_max3_f32 v44, v42, v43, v44
        ''')
        self.rows_reduce('v44', 'v45', 'max')
        a(f'''
        s_mov_b64 exec, 0xf
        ds_write_b32 v11, v44
        s_mov_b64 exec, -1
        s_waitcnt lgkmcnt(0)
        s_barrier
        ds_read_b128 v[20:23], v10
        ds_read_b128 v[24:27], v10 offset:16
        v_lshrrev_b32 v28, 1, v0               ; P write address pieces
        s_lshr_b32 s7, s3, 1
        s_lshl_b32 s7, s7, 6                   ; u*64 bytes
        s_and_b32 s44, s3, 1
        s_lshl_b32 s44, s44, 3                 ; (w&1)*8 bytes
        s_add_u32 s7, s7, s44
        s_add_u32 s7, s7, {L_P}
        v_lshlrev_b32 v28, 8, v8
        v_lshl_or_b32 v28, v4, 4, v28          ; head*256 + q*16
        v_add_u32 v28, s7, v28
        s_mov_b32 s7, {LOG2E}
        s_waitcnt lgkmcnt(0)
        v_max3_f32 v20, v20, v21, v22
        v_max3_f32 v24, v24, v25, v26
        v_max3_f32 v20, v20, v23, v27
        v_max_f32 v20, v20, v24                ; M
        v_sub_f32 v40, v40, v20
        v_sub_f32 v41, v41, v20
        v_sub_f32 v42, v42, v20
        v_sub_f32 v43, v43, v20
        v_mul_f32 v40, s7, v40
        v_mul_f32 v41, s7, v41
        v_mul_f32 v42, s7, v42
        v_mul_f32 v43, s7, v43
        v_exp_f32 v40, v40
        v_exp_f32 v41, v41
        v_exp_f32 v42, v42
        v_exp_f32 v43, v43
        s_nop 0
        v_cvt_pk_bf16_f32 v46, v40, v41
        v_cvt_pk_bf16_f32 v47, v42, v43
        v_add_f32 v44, v40, v41
        v_add_f32 v45, v42, v43
        v_add_f32 v44, v44, v45
        s_mov_b64 exec, s[48:49]
        ds_write_b64 v28, v[46:47]
        s_mov_b64 exec, -1
        ''')
        self.rows_reduce('v44', 'v45', 'add')
        a(f'''
        s_mov_b64 exec, 0xf
        ds_write_b32 v11, v44 offset:{L_L-L_M}
        s_mov_b64 exec, -1
        ; V tr-read base address
        v_bfe_u32 v28, v0, 2, 4
        v_and_b32 v29, 7, v28
        v_lshlrev_b32 v29, 1, v29              ; 2*(key&7)
        v_bfe_u32 v30, v0, 1, 1                ; c/2
        s_lshl_b32 s7, s3, 1
        v_add_u32 v30, s7, v30                 ; 2w + c/2
        v_xor_b32 v30, v30, v29
        v_lshlrev_b32 v30, 4, v30
        v_lshl_or_b32 v30, v28, 8, v30
        v_and_b32 v29, 1, v0
        v_lshl_or_b32 v30, v29, 3, v30
        v_add_u32 v30, {L_V}, v30
        v_lshlrev_b32 v31, 8, v8
        v_lshl_or_b32 v31, v4, 4, v31
        v_add_u32 v31, {L_P}, v31
        s_cmp_eq_u32 s46, 0
        s_cbranch_scc1 L_w0
        s_waitcnt vmcnt(4)
        s_branch L_w1
        L_w0:
        s_waitcnt vmcnt(0)
        L_w1:
        s_waitcnt lgkmcnt(0)
        ''')
        self.stamp(7)
        a('s_barrier                              ; B4 : P, l, V ready')
        self.stamp(8)
        for u in range(4):
            a(f'ds_read_b128 v[{32+4*u}:{35+4*u}], v31 offset:{u*64}')
            a(f'ds_read_b64_tr_b16 v[{48+4*u}:{49+4*u}], v30 offset:{u*8192}')
            a(f'ds_read_b64_tr_b16 v[{50+4*u}:{51+4*u}], v30 offset:{u*8192+4096}')
        for u in range(4):
            a(f's_waitcnt lgkmcnt({3*(3-u)})') if not self.diag else (a('s_waitcnt lgkmcnt(0)') if u == 0 else None)
            c = '0' if u == 0 else 'v[20:23]'
            a(f'v_mfma_f32_16x16x32_bf16 v[20:23], v[{32+4*u}:{35+4*u}], v[{48+4*u}:{51+4*u}], {c}')
        a(f'''
        v_cmp_eq_u32 s[44:45], 1, v4
        v_cmp_eq_u32 s[46:47], 2, v4
        v_cmp_eq_u32 vcc, 3, v4
        v_lshlrev_b32 v24, 8, v4               ; head*256
        v_lshlrev_b32 v25, 1, v3
        v_add_u32 v24, v24, v25
        s_lshl_b32 s7, s3, 5
        s_lshl_b32 s50, s2, 0
        s_lshl_b32 s50, s4, 5
        s_add_u32 s50, s50, s5
        s_lshl_b32 s50, s50, 11                ; (g*32+s)*2048
        s_add_u32 s51, s50, {WS_OB}
        s_add_u32 s7, s7, s51
        v_cndmask_b32 v20, v20, v21, s[44:45]
        v_cndmask_b32 v20, v20, v22, s[46:47]
        v_cndmask_b32 v20, v20, v23, vcc
        s_nop 1
        v_mov_b32_dpp v21, v20 quad_perm:[1,0,3,2] row_mask:0xf bank_mask:0xf
        s_nop 0
        v_cvt_pk_bf16_f32 v20, v20, v21
        v_min_u32 v20, -2, v20
        s_mov_b32 exec_lo, 0x55555555
        s_mov_b32 exec_hi, 0x55555555
        buffer_store_dword v20, v24, s[28:31], s7 offen sc1
        s_mov_b64 exec, -1
        ''')
        self.stamp(9)
        a('''
        s_cmp_lt_u32 s5, 16
        s_cbranch_scc1 L_wo
        s_cmp_lt_u32 s5, 30
        s_cbranch_scc1 L_mlp
        s_branch L_fin
        ''')
        self.role_wo()
        self.role_mlp()
        self.role_fin()
        self.comm()
        a('L_exit:')
        a('s_endpgm')
        return wrap(a.text(), 256, 576, LDS_BYTES, 128, sgpr=100)

    def tag_insert(self, regs, tmp_s):
        a = self.a
        for k, r in enumerate(regs):
            a(f's_bfe_u32 {tmp_s}, s42, {(8 << 16) | (8 * k)}')
            a(f'v_and_b32 {r}, 0xffffff00, {r}')
            a(f'v_or_b32 {r}, {tmp_s}, {r}')
    def tag_check(self, granules, t0, t1, first=True):
        a = self.a
        for i, b in enumerate(granules):
            a(f'v_perm_b32 {t0}, v{b+1}, v{b}, s53')
            a(f'v_perm_b32 {t1}, v{b+3}, v{b+2}, s54')
            a(f'v_or_b32 {t0}, {t0}, {t1}')
            if i == 0:
                a(f'v_cmp_ne_u32 vcc, s42, {t0}')
            else:
                a(f'v_cmp_ne_u32 s[44:45], s42, {t0}')
                a('s_nop 0')
                a('s_or_b64 vcc, vcc, s[44:45]')
    def tag_consts(self):
        self.a('s_mov_b32 s53, 0x0c0c0400')
        self.a('s_mov_b32 s54, 0x04000c0c')

    def role_wo(self):
        a = self.a
        a('L_wo:')
        a(f'''
        v_and_b32 v8, 31, v0
        v_lshrrev_b32 v9, 5, v0
        v_lshlrev_b32 v10, 11, v8              ; c*2048
        v_lshl_or_b32 v11, v9, 4, v10          ; + kh*16
        s_lshl_b32 s7, s4, 16                  ; g*32*2048
        s_add_u32 s7, s7, {WS_OB}
        s_lshr_b32 s44, s3, 1
        s_lshl_b32 s45, s44, 8                 ; h*256
        s_and_b32 s46, s3, 1
        s_lshl_b32 s46, s46, 7                 ; dhalf*128
        s_add_u32 s45, s45, s46
        s_add_u32 s55, s7, s45
        s_lshl_b32 s44, s44, 3                 ; h*8
        s_add_u32 s56, s7, s44
        s_add_u32 s56, s56, 1024
        v_bfe_u32 v12, v0, 4, 1                ; colhalf
        v_bfe_u32 v13, v0, 2, 2                ; r
        v_and_b32 v14, 3, v0                   ; c
        v_lshlrev_b32 v15, 9, v9
        v_lshl_or_b32 v15, v13, 6, v15         ; + r*64
        v_lshl_or_b32 v15, v12, 5, v15         ; + colhalf*32
        v_lshl_or_b32 v15, v14, 3, v15         ; + c*8
        v_add_u32 v15, s39, v15
        s_waitcnt vmcnt(0)
        ''')
        for st in range(4):
            a(f'ds_read_b64_tr_b16 v[{48+4*st}:{49+4*st}], v15 offset:{st*1024}')
            a(f'ds_read_b64_tr_b16 v[{50+4*st}:{51+4*st}], v15 offset:{st*1024+256}')
        self.stamp(10)
        self.poll_head('L_wo_p1')
        a(f'''
        buffer_load_dwordx2 v[16:17], v10, s[28:31], s56 offen sc1
        buffer_load_dwordx4 v[32:35], v11, s[28:31], s55 offen sc1
        buffer_load_dwordx4 v[36:39], v11, s[28:31], s55 offen offset:32 sc1
        buffer_load_dwordx4 v[40:43], v11, s[28:31], s55 offen offset:64 sc1
        buffer_load_dwordx4 v[44:47], v11, s[28:31], s55 offen offset:96 sc1
        s_waitcnt vmcnt(0)
        v_max3_u32 v18, v16, v17, v32
        v_max3_u32 v19, v33, v34, v35
        v_max3_u32 v18, v18, v36, v37
        v_max3_u32 v19, v19, v38, v39
        v_max3_u32 v18, v18, v40, v41
        v_max3_u32 v19, v19, v42, v43
        v_max3_u32 v18, v18, v44, v45
        v_max3_u32 v19, v19, v46, v47
        v_max_u32 v18, v18, v19
        v_cmp_eq_u32 vcc, -1, v18
        ''')
        self.poll_tail('L_wo_p1')
        self.stamp(11)
        a(f'''
        s_waitcnt lgkmcnt(0)
        v_mfma_f32_32x32x16_bf16 v[64:79], v[32:35], v[48:51], 0
        v_mfma_f32_32x32x16_bf16 v[64:79], v[36:39], v[52:55], v[64:79]
        v_mfma_f32_32x32x16_bf16 v[64:79], v[40:43], v[56:59], v[64:79]
        v_mfma_f32_32x32x16_bf16 v[64:79], v[44:47], v[60:63], v[64:79]
        v_mov_b32 v18, v16
        ''')
        for r in (8, 4, 2, 1):
            self.nop(2)
            a(f'v_max_f32_dpp v18, v18, v18 row_ror:{r} row_mask:0xf bank_mask:0xf')
        a('v_mov_b32 v19, v18')
        self.nop(2)
        a('v_permlane16_swap_b32 v18, v19')
        self.nop(1)
        a(f'''
        v_max_f32 v18, v18, v19
        v_sub_f32 v16, v16, v18
        v_mul_f32 v16, {LOG2E}, v16
        v_exp_f32 v16, v16
        s_nop 0
        v_mul_f32 v17, v16, v17
        ''')
        for r in (8, 4, 2, 1):
            self.nop(2)
            a(f'v_add_f32_dpp v17, v17, v17 row_ror:{r} row_mask:0xf bank_mask:0xf')
        a('v_mov_b32 v19, v17')
        self.nop(2)
        a('v_permlane16_swap_b32 v17, v19')
        self.nop(1)
        a(f'''
        v_add_f32 v17, v17, v19
        v_rcp_f32 v17, v17
        s_nop 0
        v_mul_f32 v16, v16, v17
        s_lshl_b32 s7, s3, 7
        s_add_u32 s7, s7, {L_W}
        v_lshlrev_b32 v18, 2, v8
        v_add_u32 v18, s7, v18
        v_lshlrev_b32 v19, 4, v9
        v_add_u32 v19, s7, v19                 ; L_W + w*128 + half*16
        s_mov_b32 exec_hi, 0
        ds_write_b32 v18, v16
        s_mov_b64 exec, -1
        s_waitcnt lgkmcnt(0)
        ds_read_b128 v[80:83], v19
        ds_read_b128 v[84:87], v19 offset:32
        ds_read_b128 v[88:91], v19 offset:64
        ds_read_b128 v[92:95], v19 offset:96
        s_waitcnt lgkmcnt(0)
        v_mul_f32 v20, v64, v80
        v_mul_f32 v21, v65, v81
        v_mul_f32 v22, v66, v82
        v_mul_f32 v23, v67, v83
        ''')
        for r in range(4, 16):
            a(f'v_fmac_f32 v{20+(r&3)}, v{64+r}, v{80+r}')
        a('''
        v_add_f32 v20, v20, v21
        v_add_f32 v22, v22, v23
        v_add_f32 v20, v20, v22
        v_mov_b32 v21, v20
        s_nop 1
        v_permlane32_swap_b32 v20, v21
        s_nop 0
        v_add_f32 v20, v20, v21
        ''')
        a(f'''
        s_lshl_b32 s7, s3, 7
        s_add_u32 s7, s7, {L_OP}
        v_lshlrev_b32 v18, 2, v8
        v_add_u32 v18, s7, v18
        s_mov_b32 exec_hi, 0
        ds_write_b32 v18, v20
        s_mov_b64 exec, -1
        s_waitcnt lgkmcnt(0)
        s_barrier
        s_cmp_lg_u32 s3, 0
        s_cbranch_scc1 L_wo_end
        v_and_b32 v18, 7, v0
        v_lshlrev_b32 v18, 4, v18              ; quad*16
        v_add_u32 v19, {L_OP}, v18
        ''')
        for w in range(8):
            a(f'ds_read_b128 v[{32+4*w}:{35+4*w}], v19 offset:{w*128}')
        a(f'''
        v_lshrrev_b32 v20, 3, v0
        v_lshlrev_b32 v20, 14, v20
        v_add_u32 v20, v20, v18
        s_lshl_b32 s7, s4, 11
        s_lshl_b32 s44, s5, 7
        s_add_u32 s7, s7, s44
        s_add_u32 s55, s7, {WS_H3}
        s_waitcnt lgkmcnt(0)
        ''')
        for k in range(4):
            a(f'v_add_f32 v{32+k}, v{32+k}, v{36+k}')
            a(f'v_add_f32 v{40+k}, v{40+k}, v{44+k}')
            a(f'v_add_f32 v{48+k}, v{48+k}, v{52+k}')
            a(f'v_add_f32 v{56+k}, v{56+k}, v{60+k}')
        for k in range(4):
            a(f'v_add_f32 v{32+k}, v{32+k}, v{40+k}')
            a(f'v_add_f32 v{48+k}, v{48+k}, v{56+k}')
        for k in range(4):
            a(f'v_add_f32 v{32+k}, v{32+k}, v{48+k}')
        self.tag_insert(['v32', 'v33', 'v34', 'v35'], 's7')
        a('buffer_store_dwordx4 v[32:35], v20, s[28:31], s55 offen sc1')
        self.stamp(12)
        a('L_wo_end:')
        self.stamp_flush('wo')
        a('s_endpgm')

    def gather_h(self, lab, colbase_sgpr):
        a = self.a
        a(f'''
        v_lshlrev_b32 v8, 11, v4               ; pq*2048
        v_lshl_or_b32 v8, v3, 4, v8            ; + cq*16
        s_lshl_b32 s7, s4, 14                  ; x*8*2048
        s_add_u32 s7, s7, {WS_H3}
        s_add_u32 s55, s7, {colbase_sgpr}
        s_add_u32 s56, s55, 8192
        ''')
        self.tag_consts()
        self.stamp(10)
        self.poll_head(lab)
        a(f'''
        buffer_load_dwordx4 v[32:35], v8, s[28:31], s55 offen sc1
        buffer_load_dwordx4 v[36:39], v8, s[28:31], s56 offen sc1
        s_waitcnt vmcnt(0)
        ''')
        self.tag_check([32, 36], 'v40', 'v41')
        self.poll_tail(lab)
        self.stamp(11)
        for k in range(8):
            a(f'v_and_b32 v{32+k}, 0xffffff00, v{32+k}')
        for k in range(4):
            a(f'v_add_f32 v{20+k}, v{32+k}, v{36+k}')
        for k in range(4):
            a(f'v_mov_b32 v{32+k}, v{20+k}')
        self.nop(1)
        for k in range(4):
            a(f'v_permlane16_swap_b32 v{20+k}, v{32+k}')
        self.nop(1)
        for k in range(4):
            a(f'v_add_f32 v{20+k}, v{20+k}, v{32+k}')
        for k in range(4):
            a(f'v_mov_b32 v{32+k}, v{20+k}')
        self.nop(1)
        for k in range(4):
            a(f'v_permlane32_swap_b32 v{20+k}, v{32+k}')
        self.nop(1)
        for k in range(4):
            a(f'v_add_f32 v{20+k}, v{20+k}, v{32+k}')
        a('''
        v_cvt_pk_bf16_f32 v24, v20, v21
        v_cvt_pk_bf16_f32 v25, v22, v23
        v_lshlrev_b32 v20, 16, v24
        v_and_b32 v21, 0xffff0000, v24
        v_lshlrev_b32 v22, 16, v25
        v_and_b32 v23, 0xffff0000, v25
        v_lshlrev_b32 v32, 16, v18
        v_and_b32 v33, 0xffff0000, v18
        v_lshlrev_b32 v34, 16, v19
        v_and_b32 v35, 0xffff0000, v19
        v_add_f32 v20, v20, v32
        v_add_f32 v21, v21, v33
        v_add_f32 v22, v22, v34
        v_add_f32 v23, v23, v35
        v_cvt_pk_bf16_f32 v24, v20, v21
        v_cvt_pk_bf16_f32 v25, v22, v23
        v_lshlrev_b32 v20, 16, v24
        v_and_b32 v21, 0xffff0000, v24
        v_lshlrev_b32 v22, 16, v25
        v_and_b32 v23, 0xffff0000, v25
        ''')

    def role_mlp(self):
        a = self.a; polw = self.o['polw']
        a('L_mlp:')
        a(f'''
        s_mul_i32 s57, s4, 14
        s_add_u32 s57, s57, s5
        s_sub_u32 s57, s57, 16                 ; p
        v_lshrrev_b32 v14, 1, v0
        s_mov_b32 s7, 3584
        v_mul_lo_u32 v14, v14, s7
        v_and_b32 v15, 1, v0
        v_lshl_or_b32 v15, v15, 4, 0
        v_add_u32 v14, v14, v15
        s_mul_i32 s44, s3, {64*3584}
        s_lshl_b32 s45, s57, 5
        s_add_u32 s44, s44, s45
        s_mov_b32 m0, s39
        s_add_u32 s45, s44, {32*3584-1024}
        buffer_load_dwordx4 v14, s[20:23], s44 offen {polw} lds
        buffer_load_dwordx4 v14, s[20:23], s45 offen offset:1024 {polw} lds
        v_lshlrev_b32 v15, 12, v4
        v_lshl_or_b32 v15, v3, 3, v15          ; + j*8
        s_lshl_b32 s44, s57, 14                ; 16p*1024
        s_lshl_b32 s45, s3, 7                  ; 64w*2
        s_add_u32 s44, s44, s45
        buffer_load_dwordx2 v[48:49], v15, s[24:27], s44 offen {polw}
        buffer_load_dwordx2 v[50:51], v15, s[24:27], s44 offen offset:1024 {polw}
        buffer_load_dwordx2 v[52:53], v15, s[24:27], s44 offen offset:2048 {polw}
        buffer_load_dwordx2 v[54:55], v15, s[24:27], s44 offen offset:3072 {polw}
        v_lshlrev_b32 v16, 3, v3
        s_lshl_b32 s45, s3, 7
        v_add_u32 v16, s45, v16
        global_load_dwordx2 v[18:19], v16, s[32:33]
        v_lshlrev_b32 v12, 3, v0
        v_add_u32 v12, s39, v12
        s_waitcnt vmcnt(5)
        ''')
        self.stamp(13)
        a(f'''
        ds_read_b64_tr_b16 v[56:57], v12
        ds_read_b64_tr_b16 v[58:59], v12 offset:512
        ds_read_b64_tr_b16 v[60:61], v12 offset:1024
        ds_read_b64_tr_b16 v[62:63], v12 offset:1536
        v_mov_b32 v64, 0x3f803f80
        v_mov_b32 v65, 0x3f803f80
        v_mov_b32 v66, 0x3f803f80
        v_mov_b32 v67, 0x3f803f80
        s_waitcnt lgkmcnt(0)
        v_mfma_f32_16x16x32_bf16 v[68:71], v[64:67], v[56:59], 0
        v_mfma_f32_16x16x32_bf16 v[68:71], v[64:67], v[60:63], v[68:71]
        s_lshl_b32 s7, s3, 6
        s_add_u32 s7, s7, {L_CS}
        v_lshlrev_b32 v13, 2, v0
        v_add_u32 v13, s7, v13
        s_mov_b64 exec, 0xffff
        s_nop 4
        ds_write_b32 v13, v68
        s_mov_b64 exec, -1
        s_waitcnt vmcnt(0)
        ''')
        self.stamp(14)
        a(f'''
        s_mov_b32 s44, 0x05040100
        s_mov_b32 s45, 0x07060302
        v_perm_b32 v72, v50, v48, s44
        v_perm_b32 v73, v54, v52, s44
        v_perm_b32 v74, v50, v48, s45          ; t=1
        v_perm_b32 v75, v54, v52, s45
        v_perm_b32 v76, v51, v49, s44          ; t=2
        v_perm_b32 v77, v55, v53, s44
        v_perm_b32 v78, v51, v49, s45          ; t=3
        v_perm_b32 v79, v55, v53, s45
        s_waitcnt lgkmcnt(0)
        s_barrier
        ''')
        self.stamp(15)
        a(f'''
        v_lshlrev_b32 v13, 4, v4
        v_add_u32 v13, {L_CS}, v13
        ''')
        for w in range(8):
            a(f'ds_read_b128 v[{80+4*w}:{83+4*w}], v13 offset:{w*64}')
        a('s_waitcnt lgkmcnt(0)')
        for k in range(4):
            a(f'v_add_f32 v{80+k}, v{80+k}, v{84+k}')
            a(f'v_add_f32 v{88+k}, v{88+k}, v{92+k}')
            a(f'v_add_f32 v{96+k}, v{96+k}, v{100+k}')
            a(f'v_add_f32 v{104+k}, v{104+k}, v{108+k}')
        for k in range(4):
            a(f'v_add_f32 v{80+k}, v{80+k}, v{88+k}')
            a(f'v_add_f32 v{96+k}, v{96+k}, v{104+k}')
        for k in range(4):
            a(f'v_add_f32 v{80+k}, v{80+k}, v{96+k}')
        a('s_lshl_b32 s58, s3, 8')
        self.gather_h('L_mlp_p', 's58')
        a(f'''
        v_add_f32 v26, v20, v21
        v_add_f32 v27, v22, v23
        v_add_f32 v26, v26, v27
        v_mul_f32 v27, v20, v20
        v_fmac_f32 v27, v21, v21
        v_fmac_f32 v27, v22, v22
        v_fmac_f32 v27, v23, v23
        s_lshl_b32 s7, s3, 7
        s_add_u32 s7, s7, {L_LN}
        v_lshlrev_b32 v28, 3, v3
        v_add_u32 v28, s7, v28
        s_mov_b64 exec, 0xffff
        ds_write_b64 v28, v[24:25]
        s_mov_b64 exec, -1
        v_lshlrev_b32 v29, 3, v4
        v_add_u32 v29, s7, v29                 ; + kq*8
        ''')
        for r in (8, 4, 2, 1):
            a(f'v_add_f32_dpp v26, v26, v26 row_ror:{r} row_mask:0xf bank_mask:0xf')
            a(f'v_add_f32_dpp v27, v27, v27 row_ror:{r} row_mask:0xf bank_mask:0xf')
            self.nop(1)
        a(f'''
        s_waitcnt lgkmcnt(0)
        ds_read2_b64 v[32:35], v29 offset0:0 offset1:4
        ds_read2_b64 v[36:39], v29 offset0:8 offset1:12
        s_lshl_b32 s7, s3, 3
        s_add_u32 s7, s7, {L_ST}
        v_mov_b32 v30, s7
        s_mov_b64 exec, 1
        ds_write_b64 v30, v[26:27]
        s_mov_b64 exec, -1
        s_waitcnt lgkmcnt(0)
        v_mfma_f32_16x16x32_bf16 v[40:43], v[32:35], v[56:59], 0
        v_mfma_f32_16x16x32_bf16 v[40:43], v[36:39], v[60:63], v[40:43]
        s_lshl_b32 s7, s3, 6
        s_add_u32 s7, s7, {L_QP}
        v_lshlrev_b32 v13, 2, v0
        v_add_u32 v13, s7, v13
        s_mov_b64 exec, 0xffff
        s_nop 4
        ds_write_b32 v13, v40
        s_mov_b64 exec, -1
        s_waitcnt lgkmcnt(0)
        s_barrier
        v_lshlrev_b32 v13, 4, v4
        v_add_u32 v13, {L_QP}, v13
        v_mov_b32 v14, {L_ST}
        ''')
        for w in range(8):
            a(f'ds_read_b128 v[{84+4*w}:{87+4*w}], v13 offset:{w*64}')
        for i in range(4):
            a(f'ds_read_b128 v[{32+4*i}:{35+4*i}], v14 offset:{i*16}')
        a('s_waitcnt lgkmcnt(0)')
        a('''
        v_add_f32 v32, v32, v34
        v_add_f32 v33, v33, v35
        v_add_f32 v36, v36, v38
        v_add_f32 v37, v37, v39
        v_add_f32 v40, v40, v42
        v_add_f32 v41, v41, v43
        v_add_f32 v44, v44, v46
        v_add_f32 v45, v45, v47
        v_add_f32 v32, v32, v36
        v_add_f32 v33, v33, v37
        v_add_f32 v40, v40, v44
        v_add_f32 v41, v41, v45
        v_add_f32 v32, v32, v40
        v_add_f32 v33, v33, v41
        v_mul_f32 v32, 0x3b000000, v32         ; mean
        v_mul_f32 v33, 0x3b000000, v33         ; E[h^2]
        v_fma_f32 v33, -v32, v32, v33          ; var
        v_max_f32 v33, 0, v33
        v_add_f32 v33, 0x3727c5ac, v33
        v_rsq_f32 v33, v33
        ''')
        for k in range(4):
            a(f'v_add_f32 v{84+k}, v{84+k}, v{88+k}')
            a(f'v_add_f32 v{92+k}, v{92+k}, v{96+k}')
            a(f'v_add_f32 v{100+k}, v{100+k}, v{104+k}')
            a(f'v_add_f32 v{108+k}, v{108+k}, v{112+k}')
        for k in range(4):
            a(f'v_add_f32 v{84+k}, v{84+k}, v{92+k}')
            a(f'v_add_f32 v{100+k}, v{100+k}, v{108+k}')
        for k in range(4):
            a(f'v_add_f32 v{84+k}, v{84+k}, v{100+k}')
        for k in range(4):
            a(f'v_fma_f32 v{84+k}, -v32, v{80+k}, v{84+k}')
        for k in range(4):
            a(f'v_mul_f32 v{84+k}, v{84+k}, v33')
        a('''
        v_cvt_pk_bf16_f32 v34, v84, v85
        v_cvt_pk_bf16_f32 v35, v86, v87
        v_lshlrev_b32 v84, 16, v34
        v_and_b32 v85, 0xffff0000, v34
        v_lshlrev_b32 v86, 16, v35
        v_and_b32 v87, 0xffff0000, v35
        ''')
        for k in range(4):
            a(f'v_mul_f32 v{88+k}, 0xbfb8aa3b, v{84+k}')
        for k in range(4):
            a(f'v_exp_f32 v{88+k}, v{88+k}')
        a('s_nop 0')
        for k in range(4):
            a(f'v_add_f32 v{88+k}, 1.0, v{88+k}')
        for k in range(4):
            a(f'v_rcp_f32 v{88+k}, v{88+k}')
        a('s_nop 0')
        for k in range(4):
            a(f'v_mul_f32 v{84+k}, v{84+k}, v{88+k}')
        a(f'''
        v_cvt_pk_bf16_f32 v34, v84, v85
        v_cvt_pk_bf16_f32 v35, v86, v87
        s_nop 1
        v_mfma_f32_16x16x16_bf16 v[36:39], v[34:35], v[72:73], 0
        v_mfma_f32_16x16x16_bf16 v[40:43], v[34:35], v[74:75], 0
        v_mfma_f32_16x16x16_bf16 v[44:47], v[34:35], v[76:77], 0
        v_mfma_f32_16x16x16_bf16 v[48:51], v[34:35], v[78:79], 0
        v_lshlrev_b32 v13, 4, v3               ; j*16
        s_lshl_b32 s7, s57, 11
        s_lshl_b32 s44, s3, 8
        s_add_u32 s7, s7, s44
        s_add_u32 s55, s7, {WS_H4}
        s_nop 4
        v_mov_b32 v52, v36
        v_mov_b32 v53, v40
        v_mov_b32 v54, v44
        v_mov_b32 v55, v48
        ''')
        self.tag_insert(['v52', 'v53', 'v54', 'v55'], 's7')
        a('''
        s_mov_b64 exec, 0xffff
        buffer_store_dwordx4 v[52:55], v13, s[28:31], s55 offen sc1
        s_mov_b64 exec, -1
        ''')
        self.stamp(12)
        self.stamp_flush('mlp')
        a('s_endpgm')

    def role_fin(self):
        a = self.a
        a('L_fin:')
        a(f'''
        s_lshl_b32 s57, s4, 1
        s_add_u32 s57, s57, s5
        s_sub_u32 s57, s57, 30                 ; f
        v_and_b32 v16, 7, v3
        v_lshlrev_b32 v16, 3, v16
        s_lshl_b32 s45, s57, 6
        v_add_u32 v16, s45, v16
        global_load_dwordx2 v[18:19], v16, s[32:33]
        s_waitcnt vmcnt(0)
        s_cmp_lg_u32 s3, 0
        s_cbranch_scc1 L_fin_h4
        ''')
        a('v_mov_b32 v5, v3')
        a('v_and_b32 v3, 7, v3')
        a('s_lshl_b32 s58, s57, 7')
        self.gather_h('L_fin_p', 's58')
        a('v_mov_b32 v3, v5')
        a('L_fin_h4:')
        self.tag_consts()
        a(f'''
        v_and_b32 v8, 7, v0
        v_lshrrev_b32 v9, 3, v0
        v_lshlrev_b32 v10, 11, v9
        v_lshl_or_b32 v10, v8, 4, v10
        s_lshl_b32 s7, s3, 14                  ; w*8*2048
        s_lshl_b32 s44, s57, 7                 ; f*128
        s_add_u32 s7, s7, s44
        s_add_u32 s55, s7, {WS_H4}
        s_add_u32 s56, s55, {64*2048}
        s_cmp_lt_u32 s3, 6
        s_cselect_b32 s56, s56, s55
        s_cselect_b32 s59, 1.0, 0
        ''')
        self.poll_head('L_fin_p4')
        a('''
        buffer_load_dwordx4 v[32:35], v10, s[28:31], s55 offen sc1
        buffer_load_dwordx4 v[36:39], v10, s[28:31], s56 offen sc1
        s_waitcnt vmcnt(0)
        ''')
        self.tag_check([32, 36], 'v40', 'v41')
        self.poll_tail('L_fin_p4')
        self.stamp(12)
        for k in range(8):
            a(f'v_and_b32 v{32+k}, 0xffffff00, v{32+k}')
        for k in range(4):
            a(f'v_fma_f32 v{32+k}, v{36+k}, s59, v{32+k}')
        self.nop(1)
        for k in range(4):
            a(f'v_add_f32_dpp v{32+k}, v{32+k}, v{32+k} row_ror:8 row_mask:0xf bank_mask:0xf')
        for k in range(4):
            a(f'v_mov_b32 v{36+k}, v{32+k}')
        self.nop(1)
        for k in range(4):
            a(f'v_permlane16_swap_b32 v{32+k}, v{36+k}')
        self.nop(1)
        for k in range(4):
            a(f'v_add_f32 v{32+k}, v{32+k}, v{36+k}')
        for k in range(4):
            a(f'v_mov_b32 v{36+k}, v{32+k}')
        self.nop(1)
        for k in range(4):
            a(f'v_permlane32_swap_b32 v{32+k}, v{36+k}')
        self.nop(1)
        for k in range(4):
            a(f'v_add_f32 v{32+k}, v{32+k}, v{36+k}')
        a(f'''
        s_lshl_b32 s7, s3, 7
        s_add_u32 s7, s7, {L_OP}
        v_lshlrev_b32 v11, 4, v8
        v_add_u32 v12, s7, v11
        s_mov_b64 exec, 0xff
        ds_write_b128 v12, v[32:35]
        s_mov_b64 exec, -1
        s_waitcnt lgkmcnt(0)
        s_barrier
        s_cmp_lg_u32 s3, 0
        s_cbranch_scc1 L_fin_end
        v_add_u32 v12, {L_OP}, v11
        ''')
        for w in range(8):
            a(f'ds_read_b128 v[{32+4*w}:{35+4*w}], v12 offset:{w*128}')
        a('s_waitcnt lgkmcnt(0)')
        for k in range(4):
            a(f'v_add_f32 v{32+k}, v{32+k}, v{36+k}')
            a(f'v_add_f32 v{40+k}, v{40+k}, v{44+k}')
            a(f'v_add_f32 v{48+k}, v{48+k}, v{52+k}')
            a(f'v_add_f32 v{56+k}, v{56+k}, v{60+k}')
        for k in range(4):
            a(f'v_add_f32 v{32+k}, v{32+k}, v{40+k}')
            a(f'v_add_f32 v{48+k}, v{48+k}, v{56+k}')
        for k in range(4):
            a(f'v_add_f32 v{32+k}, v{32+k}, v{48+k}')
        a(f'''
        v_cvt_pk_bf16_f32 v36, v32, v33
        v_cvt_pk_bf16_f32 v37, v34, v35
        v_lshlrev_b32 v32, 16, v36
        v_and_b32 v33, 0xffff0000, v36
        v_lshlrev_b32 v34, 16, v37
        v_and_b32 v35, 0xffff0000, v37
        v_add_f32 v32, v32, v20
        v_add_f32 v33, v33, v21
        v_add_f32 v34, v34, v22
        v_add_f32 v35, v35, v23
        v_cvt_pk_bf16_f32 v36, v32, v33
        v_cvt_pk_bf16_f32 v37, v34, v35
        v_lshlrev_b32 v11, 3, v8
        s_lshl_b32 s7, s57, 6
        v_add_u32 v11, s7, v11
        s_waitcnt lgkmcnt(0)
        s_mov_b64 exec, 0xff
        global_store_dwordx2 v11, v[36:37], s[34:35]
        s_cmp_lg_u32 s57, 0
        s_cbranch_scc1 L_fin_end
        s_add_u32 s7, s43, 1
        v_mov_b32 v12, s7
        v_mov_b32 v13, 0
        s_mov_b64 exec, 1
        buffer_store_dword v12, v13, s[28:31], 0 offen sc1
        L_fin_end:
        s_mov_b64 exec, -1
        ''')
        self.stamp(13)
        self.stamp_flush('fin')
        a('s_endpgm')

    def comm(self):
        a = self.a
        a('L_comm:')
        a(f'''
        s_getreg_b32 s6, hwreg(HW_REG_XCC_ID, 0, 3)
        s_lshl_b32 s50, s4, 5
        s_add_u32 s50, s50, s5                 ; g*32+s
        s_lshl_b32 s51, s50, 11
        s_add_u32 s51, s51, {WS_OB}
        v_lshlrev_b32 v2, 4, v0                ; lane*16
        v_mov_b32 v8, -1
        v_mov_b32 v9, -1
        v_mov_b32 v10, -1
        v_mov_b32 v11, -1
        s_waitcnt lgkmcnt(0)
        s_load_dword s43, s[28:29], 0x0
        buffer_store_dwordx4 v[8:11], v2, s[28:31], s51 offen sc1
        s_mov_b64 exec, 3
        buffer_store_dwordx4 v[8:11], v2, s[28:31], s51 offen offset:1024 sc1
        s_mov_b64 exec, -1
        s_waitcnt lgkmcnt(0)
        s_mul_i32 s42, s43, 0x9e3779b1
        s_add_u32 s42, s42, 0x7f4a7c15
        s_and_b32 s40, s42, 0xfff8             ; tagA
        s_lshr_b32 s41, s42, 16
        s_and_b32 s41, s41, 0xfff8             ; tagB
        ; addresses
        v_and_b32 v12, 3, v0                   ; gq
        v_bfe_u32 v13, v0, 2, 3                ; w' = (lane>>2)&7
        v_lshlrev_b32 v14, 6, v13
        v_lshl_or_b32 v14, v12, 4, v14
        v_add_u32 v14, {L_QP}, v14             ; q partial read address
        v_lshrrev_b32 v15, 2, v0
        v_lshlrev_b32 v15, 7, v15
        v_lshl_or_b32 v15, v12, 4, v15
        s_lshl_b32 s55, s4, 12
        s_add_u32 s55, s55, {WS_Q}
        s_add_u32 s56, s55, 2048
        s_lshl_b32 s7, s5, 7
        s_add_u32 s57, s55, s7
        s_or_b32 s44, s40, s6
        s_or_b32 s45, s41, s6
        v_mov_b32 v16, s44
        v_mov_b32 v17, s45
        v_mov_b32 v18, s40
        v_mov_b32 v19, s41
        s_waitcnt vmcnt(0)
        ''')
        self.stamp(3)
        a(f'''
        s_barrier                              ; B1
        ds_read_b128 v[20:23], v14
        s_waitcnt lgkmcnt(0)
        ''')
        self.stamp(4)
        for r in (4, 8):
            self.nop(1)
            for k in range(4):
                a(f'v_add_f32_dpp v{20+k}, v{20+k}, v{20+k} row_ror:{r} row_mask:0xf bank_mask:0xf')
        for k in range(4):
            a(f'v_mov_b32 v{24+k}, v{20+k}')
        self.nop(1)
        for k in range(4):
            a(f'v_permlane16_swap_b32 v{20+k}, v{24+k}')
        self.nop(1)
        for k in range(4):
            a(f'v_add_f32 v{20+k}, v{20+k}, v{24+k}')
        a(f'''
        v_cvt_pk_bf16_f32 v24, v20, v21
        v_cvt_pk_bf16_f32 v25, v22, v23
        s_mov_b32 s7, 0xffff0000
        v_lshl_or_b32 v20, v24, 16, v16
        v_and_or_b32 v21, v24, s7, v17
        v_lshl_or_b32 v22, v25, 16, v16
        v_and_or_b32 v23, v25, s7, v17
        v_lshlrev_b32 v26, 4, v12
        s_mov_b64 exec, 0xf
        buffer_store_dwordx4 v[20:23], v26, s[28:31], s57 offen sc1
        s_mov_b64 exec, -1
        s_setprio 3
        ''')
        self.stamp(5)
        self.poll_head('L_q_poll')
        a(f'''
        buffer_load_dwordx4 v[28:31], v15, s[28:31], s55 offen sc1
        buffer_load_dwordx4 v[32:35], v15, s[28:31], s56 offen sc1
        s_waitcnt vmcnt(0)
        v_xor_b32 v36, v28, v18
        v_xor_b32 v37, v29, v19
        v_xor_b32 v38, v30, v18
        v_xor_b32 v39, v31, v19
        v_or3_b32 v36, v36, v37, v38
        v_xor_b32 v37, v32, v18
        v_xor_b32 v38, v33, v19
        v_or3_b32 v36, v36, v39, v37
        v_xor_b32 v39, v34, v18
        v_xor_b32 v37, v35, v19
        v_or3_b32 v36, v36, v38, v39
        v_or_b32 v36, v36, v37
        v_and_b32 v36, 0xfff8, v36
        v_cmp_ne_u32 vcc, 0, v36
        ''')
        self.poll_tail('L_q_poll')
        self.stamp(6)
        a(f'''
        s_mov_b32 s7, 0x07060302
        v_perm_b32 v36, v29, v28, s7
        v_perm_b32 v37, v31, v30, s7
        v_perm_b32 v38, v33, v32, s7
        v_perm_b32 v39, v35, v34, s7
        v_lshlrev_b32 v40, 3, v0
        v_add_u32 v40, {L_Q}, v40
        ds_write_b64 v40, v[36:37]
        ds_write_b64 v40, v[38:39] offset:512
        s_waitcnt lgkmcnt(0)
        s_barrier                              ; B2
        s_barrier                              ; B3
        s_barrier                              ; B4
        v_and_b32 v12, 3, v0
        v_lshlrev_b32 v13, 5, v12
        v_add_u32 v13, {L_M}, v13
        ds_read_b128 v[20:23], v13
        ds_read_b128 v[24:27], v13 offset:16
        ds_read_b128 v[28:31], v13 offset:{L_L-L_M}
        ds_read_b128 v[32:35], v13 offset:{L_L-L_M+16}
        v_lshlrev_b32 v14, 3, v12
        s_waitcnt lgkmcnt(0)
        v_max3_f32 v20, v20, v21, v22
        v_max3_f32 v24, v24, v25, v26
        v_max3_f32 v20, v20, v23, v27
        v_max_f32 v20, v20, v24
        v_add_f32 v28, v28, v29
        v_add_f32 v30, v30, v31
        v_add_f32 v32, v32, v33
        v_add_f32 v34, v34, v35
        v_add_f32 v28, v28, v30
        v_add_f32 v32, v32, v34
        v_add_f32 v21, v28, v32
        v_min_u32 v20, -2, v20
        v_min_u32 v21, -2, v21
        s_mov_b64 exec, 0xf
        buffer_store_dwordx2 v[20:21], v14, s[28:31], s51 offen offset:1024 sc1
        s_mov_b64 exec, -1
        ''')
        self.stamp(9)
        self.stamp_flush('comm')
        a('s_endpgm')

if __name__ == "__main__":
    import argparse
    ap = argparse.ArgumentParser()
    ap.add_argument('-o', default='k.s')
    ap.add_argument('--diag', action='store_true')
    ap.add_argument('--opt', action='append', default=[])
    args = ap.parse_args()
    opts = {}
    for kv in args.opt:
        k, v = kv.split('=', 1)
        try: v = int(v)
        except ValueError: pass
        opts[k] = v
    g = Gen(diag=args.diag, opts=opts)
    open(args.o, 'w').write(g.build())
```

```python
import sys
from asmgen import Asm, wrap, NAME

WS_EPOCH = 0
WS_Q     = 4096
WS_OA    = 65536
WS_OB    = WS_OA + 256 * 2048
WS_H3    = WS_OB + 256 * 2048
WS_H4    = WS_H3 + 64 * 2048
WS_END   = WS_H4 + 112 * 2048
WS_DBG   = 16 << 20
STAMP_OFF = 128 << 20

L_R0  = 0
L_V   = 32768
L_LN  = 65536
L_QP  = L_LN + 1024
L_Q   = L_QP + 512
L_M   = L_Q + 1024
L_L   = L_M + 128
L_P   = L_L + 128
L_FLG = L_P + 1024
L_W   = L_FLG + 64
L_OP  = L_W + 1024
L_ST  = L_OP + 1024
L_CS  = L_ST + 64
L_END = L_CS + 512
LDS_BYTES = (L_END + 255) // 256 * 256

LOG2E = 0x3fb8aa3b
SCALE = 0x3db504f3

class Gen:
    def __init__(self, diag=False, dump=False, opts=None):
        self.a = Asm()
        self.diag = diag
        self.dump = dump
        self.o = dict(pol='nt', polwq='nt', polw='nt', useA=False, spin=40000)
        if opts: self.o.update(opts)
        self.nstamp = 0
    def __call__(self, s): self.a(s)
    def nop(self, n):
        if n > 0: self.a(f's_nop {n-1}')
    def stamp(self, k):
        if self.diag:
            self.a(f's_memrealtime s[{64+2*k}:{65+2*k}]')
    def stamp_init(self):
        if self.diag:
            for k in range(16):
                self.a(f's_mov_b64 s[{64+2*k}:{65+2*k}], 0')
    def stamp_flush(self, lab):
        if not self.diag: return
        a = self.a
        if self.o.get('dbgstamps'):
            sel = self.o.get('dbgstamps')
            if sel == 1:
                m = {'wo': {0:0, 1:1, 2:3, 3:4, 4:5, 5:6, 6:8, 7:9, 8:11, 9:12}, 'mlp': {10:10, 11:11, 12:12}, 'fin': {13:12, 14:13}, 'comm': {15:6}}[lab]
            else:
                m = {'wo': {0:0, 1:9, 2:10, 3:11, 4:12}, 'mlp': {5:9, 6:13, 7:14, 8:15, 9:10, 10:11, 11:12}, 'fin': {12:11, 13:12, 14:13}, 'comm': {15:9}}[lab]
            slot = {'wo': 0, 'mlp': 16, 'fin': 30, 'comm': 0}[lab]
            sk = a.lab('L_sk')
            a('s_and_b32 s44, s3, 7')
            a('s_cmp_lg_u32 s44, 0')
            a(f's_cbranch_scc1 {sk}')
            a(f's_cmp_lg_u32 s2, {slot*8 + self.o.get("dbgg", 0)}')
            a(f's_cbranch_scc1 {sk}')
            a('s_waitcnt lgkmcnt(0)')
            a('s_mov_b64 exec, 1')
            a('s_load_dwordx2 s[44:45], s[0:1], 72')
            a('s_waitcnt lgkmcnt(0)')
            a('s_mov_b32 s46, 256')
            a('s_mov_b32 s47, 0x20000')
            a('v_mov_b32 v1, 0')
            a('s_not_b32 s64, s64')
            for idx, k in m.items():
                a(f'v_mov_b32 v3, s{64+2*k}')
                a(f'buffer_store_dword v3, v1, s[44:47], 0 offen offset:{4*idx}')
                a('s_nop 1')
            a('s_waitcnt vmcnt(0)')
            a(f'{sk}:')
            return
        a('s_waitcnt lgkmcnt(0)')
        a('s_mov_b64 exec, 1')
        a('s_mul_i32 s44, s2, 9')
        a('s_add_u32 s44, s44, s3')
        a('s_lshl_b32 s44, s44, 7')
        a(f's_add_u32 s44, s44, {STAMP_OFF}')
        a('v_mov_b32 v1, 0')
        for k in range(16):
            a(f'v_mov_b32 v2, s{64+2*k}')
            a(f'v_mov_b32 v3, s{65+2*k}')
            a(f'buffer_store_dwordx2 v[2:3], v1, s[28:31], s44 offen offset:{8*k}')
            a('s_nop 1')
        a('s_waitcnt vmcnt(0)')

    def allreduce64(self, v, tmp, op='add'):
        a = self.a
        ins = 'v_add_f32' if op == 'add' else 'v_max_f32'
        for r in (8, 4, 2, 1):
            self.nop(2)
            a(f'{ins}_dpp {v}, {v}, {v} row_ror:{r} row_mask:0xf bank_mask:0xf')
        self.rows_reduce(v, tmp, op)
    def rows_reduce(self, v, tmp, op='add'):
        a = self.a
        ins = 'v_add_f32' if op == 'add' else 'v_max_f32'
        a(f'v_mov_b32 {tmp}, {v}')
        self.nop(2)
        a(f'v_permlane16_swap_b32 {v}, {tmp}')
        self.nop(1)
        a(f'{ins} {v}, {v}, {tmp}')
        a(f'v_mov_b32 {tmp}, {v}')
        self.nop(2)
        a(f'v_permlane32_swap_b32 {v}, {tmp}')
        self.nop(1)
        a(f'{ins} {v}, {v}, {tmp}')

    def poll_head(self, lab):
        a = self.a
        a(f's_mov_b32 s52, {self.o["spin"]}')
        a(f'{lab}:')
    def poll_tail(self, lab):
        a = self.a
        a(f's_cbranch_vccz {lab}_ok')
        a('s_sub_u32 s52, s52, 1')
        a(f's_cbranch_scc0 {lab}')
        a(f'{lab}_ok:')

    def dbg_store(self, vreg, ndw, off_expr_sgpr_setup, voff, cond=None):
        pass

    def build(self):
        a = self.a; o = self.o
        pol, polwq, polw = o['pol'], o['polwq'], o['polw']
        self.stamp_init_pre = None
        if self.diag: a('s_memrealtime s[64:65]')
        a('''
        s_cmp_ge_u32 s2, 256
        s_cbranch_scc1 L_exit
        s_load_dwordx2 s[16:17], s[0:1], 24
        s_load_dwordx2 s[32:33], s[0:1], 0
        s_load_dwordx2 s[8:9], s[0:1], 8
        s_load_dwordx2 s[12:13], s[0:1], 16
        s_load_dwordx2 s[28:29], s[0:1], 80
        v_lshrrev_b32 v1, 6, v0
        v_and_b32 v0, 63, v0
        s_and_b32 s4, s2, 7
        s_lshr_b32 s5, s2, 3
        v_readfirstlane_b32 s3, v1
        s_mov_b32 s18, 4194304
        s_mov_b32 s19, 0x20000
        s_mov_b32 s10, 67108864
        s_mov_b32 s11, 0x20000
        s_mov_b32 s14, 67108864
        s_mov_b32 s15, 0x20000
        s_mov_b32 s30, 0x10000000
        s_mov_b32 s31, 0x20000
        ''')
        if self.diag:
            for k in range(1, 16): a(f's_mov_b64 s[{64+2*k}:{65+2*k}], 0')
        a('s_cmp_eq_u32 s3, 8')
        a('s_cbranch_scc1 L_comm')
        a(f'''
        v_lshrrev_b32 v1, 1, v0
        v_lshlrev_b32 v1, 13, v1
        v_and_b32 v2, 1, v0
        v_lshl_or_b32 v1, v2, 4, v1
        v_lshlrev_b32 v2, 4, v0                ; v2 = lane*16
        v_and_b32 v3, 15, v0                   ; v3 = lane&15
        v_lshrrev_b32 v4, 4, v0                ; v4 = lane>>4
        v_lshlrev_b32 v5, 8, v3
        v_lshl_or_b32 v5, v4, 4, v5            ; v5 = K voffset
        v_lshlrev_b32 v6, 1, v4
        v_xor_b32 v6, v6, v3
        v_lshlrev_b32 v6, 4, v6
        v_lshl_or_b32 v6, v4, 8, v6
        v_xor_b32 v7, 128, v6
        s_lshl_b32 s37, s3, 19
        s_lshl_b32 s7, s4, 10
        s_add_u32 s37, s37, s7
        s_lshl_b32 s7, s5, 5
        s_add_u32 s37, s37, s7
        s_add_u32 s38, s37, {262144-1024}      ; wq soffset 1 (imm offset 1024 added)
        s_lshl_b32 s36, s4, 23
        s_lshl_b32 s7, s5, 15
        s_add_u32 s36, s36, s7
        s_lshl_b32 s7, s3, 12
        s_add_u32 s36, s36, s7
        s_add_u32 s36, s36, {28672*256}        ; K/V soffset
        s_lshl_b32 s39, s3, 12                 ; w*4096
        s_mov_b32 m0, s39                      ; L_R0 + w*4096
        s_waitcnt lgkmcnt(0)
        global_load_dwordx4 v[8:11], v2, s[32:33]
        buffer_load_dwordx4 v1, s[16:19], s37 offen {polwq} lds
        buffer_load_dwordx4 v1, s[16:19], s38 offen offset:1024 {polwq} lds
        buffer_load_dwordx4 v[16:19], v5, s[8:11], s36 offen {pol}
        ''')
        self.stamp(1)
        a('''
        s_load_dwordx2 s[34:35], s[0:1], 64
        s_load_dword s43, s[28:29], 0x0
        s_load_dwordx2 s[24:25], s[0:1], 56
        s_load_dwordx2 s[20:21], s[0:1], 32
        s_load_dwordx2 s[60:61], s[0:1], 48
        s_mov_b32 s48, 0x000f000f
        s_mov_b32 s49, 0x000f000f
        s_mov_b32 s23, 0x20000
        s_mov_b32 s26, 1835008
        s_mov_b32 s27, 0x20000
        ''')
        a('s_waitcnt vmcnt(3)')
        self.stamp(2)
        for k in range(4):
            a(f'v_lshlrev_b32 v{20+2*k}, 16, v{8+k}')
            a(f'v_and_b32 v{21+2*k}, 0xffff0000, v{8+k}')
        a('''
        v_add_f32 v28, v20, v21
        v_add_f32 v29, v22, v23
        v_add_f32 v30, v24, v25
        v_add_f32 v31, v26, v27
        v_add_f32 v28, v28, v29
        v_add_f32 v30, v30, v31
        v_add_f32 v28, v28, v30
        ''')
        self.allreduce64('v28', 'v29')
        a('v_mul_f32 v28, 0x3b000000, v28        ; mean')
        for k in range(8):
            a(f'v_sub_f32 v{32+k}, v{20+k}, v28')
        a('v_mul_f32 v29, v32, v32')
        for k in range(1, 8):
            a(f'v_fmac_f32 v29, v{32+k}, v{32+k}')
        self.allreduce64('v29', 'v30')
        a('''
        v_mul_f32 v29, 0x3b000000, v29        ; var
        v_cvt_pk_bf16_f32 v30, v28, v29
        v_lshlrev_b32 v28, 16, v30
        v_and_b32 v29, 0xffff0000, v30
        v_add_f32 v29, 0x3727c5ac, v29        ; + 1e-5
        v_cvt_pk_bf16_f32 v29, v29, v29
        v_and_b32 v29, 0xffff0000, v29
        v_sqrt_f32 v29, v29
        s_nop 0
        v_cvt_pk_bf16_f32 v29, v29, v29
        v_and_b32 v29, 0xffff0000, v29
        v_rcp_f32 v30, v29
        ''')
        for k in range(8):
            a(f'v_sub_f32 v{32+k}, v{20+k}, v28')
        for k in range(4):
            a(f'v_cvt_pk_bf16_f32 v{40+k}, v{32+2*k}, v{33+2*k}')
        for k in range(4):
            a(f'v_lshlrev_b32 v{32+2*k}, 16, v{40+k}')
            a(f'v_and_b32 v{33+2*k}, 0xffff0000, v{40+k}')
        for k in range(8):
            a(f'v_mul_f32 v{20+k}, v{32+k}, v30')
        for k in range(8):
            a(f'v_fma_f32 v{40+k}, -v{20+k}, v29, v{32+k}')
        for k in range(8):
            a(f'v_fmac_f32 v{20+k}, v{40+k}, v30')
        for k in range(4):
            a(f'v_cvt_pk_bf16_f32 v{40+k}, v{20+2*k}, v{21+2*k}')
        a(f'''
        v_lshrrev_b32 v28, 3, v0
        v_and_b32 v29, 7, v0
        v_lshlrev_b32 v29, 4, v29
        s_lshl_b32 s7, s3, 7
        s_add_u32 s7, s7, {L_LN}
        v_add_u32 v29, s7, v29
        v_cmp_eq_u32 vcc, s3, v28
        s_and_saveexec_b64 s[44:45], vcc
        ds_write_b128 v29, v[40:43]
        s_mov_b64 exec, s[44:45]
        v_lshlrev_b32 v28, 3, v4
        v_add_u32 v28, s7, v28
        s_waitcnt lgkmcnt(0)
        s_mov_b32 s22, 4194304
        s_cmp_lt_u32 s5, 16
        s_cselect_b32 s20, s20, s60
        s_cselect_b32 s21, s21, s61
        s_cselect_b32 s22, s22, s26
        ds_read2_b64 v[20:23], v28 offset0:0 offset1:4
        ds_read2_b64 v[24:27], v28 offset0:8 offset1:12
        v_lshlrev_b32 v12, 3, v0
        v_add_u32 v12, s39, v12                ; L_R0 + w*4096 + lane*8
        ''')
        a('s_waitcnt vmcnt(1)')
        self.stamp(3)
        a(f'''
        buffer_load_dwordx4 v[48:51], v5, s[8:11], s36 offen offset:64 {pol}
        buffer_load_dwordx4 v[52:55], v5, s[8:11], s36 offen offset:128 {pol}
        ds_read_b64_tr_b16 v[32:33], v12
        ds_read_b64_tr_b16 v[34:35], v12 offset:512
        ds_read_b64_tr_b16 v[36:37], v12 offset:1024
        ds_read_b64_tr_b16 v[38:39], v12 offset:1536
        s_waitcnt lgkmcnt(0)
        v_mfma_f32_16x16x32_bf16 v[40:43], v[20:23], v[32:35], 0
        v_mfma_f32_16x16x32_bf16 v[40:43], v[24:27], v[36:39], v[40:43]
        v_lshlrev_b32 v13, 2, v0
        s_lshl_b32 s7, s3, 6
        s_add_u32 s7, s7, {L_QP}
        v_add_u32 v13, s7, v13
        s_mov_b64 exec, 0xffff
        s_nop 4
        ds_write_b32 v13, v40
        s_mov_b64 exec, -1
        s_waitcnt lgkmcnt(0)
        s_barrier                              ; B1
        ''')
        self.stamp(4)
        a(f'''
        s_add_u32 s7, s39, {L_V}
        s_mov_b32 m0, s7
        s_waitcnt vmcnt(2)
        buffer_load_dwordx4 v[56:59], v5, s[8:11], s36 offen offset:192 {pol}
        s_waitcnt vmcnt(2)
        buffer_load_dwordx4 v6, s[12:15], s36 offen {pol} lds
        s_waitcnt vmcnt(2)
        buffer_load_dwordx4 v7, s[12:15], s36 offen offset:1024 {pol} lds
        s_waitcnt vmcnt(2)
        buffer_load_dwordx4 v6, s[12:15], s36 offen offset:2048 {pol} lds
        s_waitcnt vmcnt(2)
        buffer_load_dwordx4 v7, s[12:15], s36 offen offset:3072 {pol} lds
        ''')
        self.stamp(5)
        a('''
        s_waitcnt lgkmcnt(0)
        s_mul_i32 s42, s43, 0x9e3779b1
        s_add_u32 s42, s42, 0x7f4a7c15
        ''')
        a(f'''
        v_and_b32 v8, 3, v0                    ; head = j&3
        v_lshlrev_b32 v9, 8, v8
        v_lshl_or_b32 v9, v4, 4, v9
        v_add_u32 v9, {L_Q}, v9                ; q frag addr
        v_lshlrev_b32 v10, 5, v8
        v_add_u32 v10, {L_M}, v10              ; L_M + head*32
        s_lshl_b32 s7, s3, 2
        v_add_u32 v11, s7, v10                 ; L_M + head*32 + w*4
        s_barrier                              ; B2 : q ready
        ''')
        self.stamp(6)
        a(f'''
        s_mov_b32 m0, s39
        s_cmp_lt_u32 s5, 16
        s_cbranch_scc0 L_rl_notwo
        v_lshrrev_b32 v14, 2, v0
        v_lshlrev_b32 v14, 10, v14
        v_and_b32 v15, 3, v0
        v_lshl_or_b32 v14, v15, 4, v14
        s_lshl_b32 s44, s4, 19
        s_lshl_b32 s45, s3, 16
        s_add_u32 s44, s44, s45
        s_lshl_b32 s45, s5, 6
        s_add_u32 s44, s44, s45
        buffer_load_dwordx4 v14, s[20:23], s44 offen {polw} lds
        s_add_u32 s44, s44, {16384-1024}
        buffer_load_dwordx4 v14, s[20:23], s44 offen offset:1024 {polw} lds
        s_add_u32 s44, s44, {16384-1024}
        buffer_load_dwordx4 v14, s[20:23], s44 offen offset:2048 {polw} lds
        s_add_u32 s44, s44, {16384-1024}
        buffer_load_dwordx4 v14, s[20:23], s44 offen offset:3072 {polw} lds
        s_mov_b32 s46, 4
        s_branch L_rl_done
        L_rl_notwo:
        s_mov_b32 s46, 0
        L_rl_done:
        ''')
        a(f'''
        ds_read_b128 v[20:23], v9
        ds_read_b128 v[24:27], v9 offset:64
        ds_read_b128 v[28:31], v9 offset:128
        ds_read_b128 v[32:35], v9 offset:192
        s_waitcnt lgkmcnt(0)
        v_mfma_f32_16x16x32_bf16 v[40:43], v[16:19], v[20:23], 0
        v_mfma_f32_16x16x32_bf16 v[40:43], v[48:51], v[24:27], v[40:43]
        v_mfma_f32_16x16x32_bf16 v[40:43], v[52:55], v[28:31], v[40:43]
        v_mfma_f32_16x16x32_bf16 v[40:43], v[56:59], v[32:35], v[40:43]
        s_mov_b32 s7, {SCALE}
        s_nop 6
        v_cvt_pk_bf16_f32 v44, v40, v41
        v_cvt_pk_bf16_f32 v45, v42, v43
        v_lshlrev_b32 v40, 16, v44
        v_and_b32 v41, 0xffff0000, v44
        v_lshlrev_b32 v42, 16, v45
        v_and_b32 v43, 0xffff0000, v45
        v_mul_f32 v40, s7, v40
        v_mul_f32 v41, s7, v41
        v_mul_f32 v42, s7, v42
        v_mul_f32 v43, s7, v43
        v_cvt_pk_bf16_f32 v44, v40, v41
        v_cvt_pk_bf16_f32 v45, v42, v43
        v_lshlrev_b32 v40, 16, v44
        v_and_b32 v41, 0xffff0000, v44
        v_lshlrev_b32 v42, 16, v45
        v_and_b32 v43, 0xffff0000, v45
        v_max_f32 v44, v40, v41
        v_max3_f32 v44, v42, v43, v44
        ''')
        self.rows_reduce('v44', 'v45', 'max')
        a(f'''
        s_mov_b64 exec, 0xf
        ds_write_b32 v11, v44
        s_mov_b64 exec, -1
        s_waitcnt lgkmcnt(0)
        s_barrier
        ds_read_b128 v[20:23], v10
        ds_read_b128 v[24:27], v10 offset:16
        v_lshrrev_b32 v28, 1, v0               ; P write address pieces
        s_lshr_b32 s7, s3, 1
        s_lshl_b32 s7, s7, 6                   ; u*64 bytes
        s_and_b32 s44, s3, 1
        s_lshl_b32 s44, s44, 3                 ; (w&1)*8 bytes
        s_add_u32 s7, s7, s44
        s_add_u32 s7, s7, {L_P}
        v_lshlrev_b32 v28, 8, v8
        v_lshl_or_b32 v28, v4, 4, v28          ; head*256 + q*16
        v_add_u32 v28, s7, v28
        s_mov_b32 s7, {LOG2E}
        s_waitcnt lgkmcnt(0)
        v_max3_f32 v20, v20, v21, v22
        v_max3_f32 v24, v24, v25, v26
        v_max3_f32 v20, v20, v23, v27
        v_max_f32 v20, v20, v24                ; M
        v_sub_f32 v40, v40, v20
        v_sub_f32 v41, v41, v20
        v_sub_f32 v42, v42, v20
        v_sub_f32 v43, v43, v20
        v_mul_f32 v40, s7, v40
        v_mul_f32 v41, s7, v41
        v_mul_f32 v42, s7, v42
        v_mul_f32 v43, s7, v43
        v_exp_f32 v40, v40
        v_exp_f32 v41, v41
        v_exp_f32 v42, v42
        v_exp_f32 v43, v43
        s_nop 0
        v_cvt_pk_bf16_f32 v46, v40, v41
        v_cvt_pk_bf16_f32 v47, v42, v43
        v_add_f32 v44, v40, v41
        v_add_f32 v45, v42, v43
        v_add_f32 v44, v44, v45
        s_mov_b64 exec, s[48:49]
        ds_write_b64 v28, v[46:47]
        s_mov_b64 exec, -1
        ''')
        self.rows_reduce('v44', 'v45', 'add')
        a(f'''
        s_mov_b64 exec, 0xf
        ds_write_b32 v11, v44 offset:{L_L-L_M}
        s_mov_b64 exec, -1
        ; V tr-read base address
        v_bfe_u32 v28, v0, 2, 4
        v_and_b32 v29, 7, v28
        v_lshlrev_b32 v29, 1, v29              ; 2*(key&7)
        v_bfe_u32 v30, v0, 1, 1                ; c/2
        s_lshl_b32 s7, s3, 1
        v_add_u32 v30, s7, v30                 ; 2w + c/2
        v_xor_b32 v30, v30, v29
        v_lshlrev_b32 v30, 4, v30
        v_lshl_or_b32 v30, v28, 8, v30
        v_and_b32 v29, 1, v0
        v_lshl_or_b32 v30, v29, 3, v30
        v_add_u32 v30, {L_V}, v30
        v_lshlrev_b32 v31, 8, v8
        v_lshl_or_b32 v31, v4, 4, v31
        v_add_u32 v31, {L_P}, v31
        s_cmp_eq_u32 s46, 0
        s_cbranch_scc1 L_w0
        s_waitcnt vmcnt(4)
        s_branch L_w1
        L_w0:
        s_waitcnt vmcnt(0)
        L_w1:
        s_waitcnt lgkmcnt(0)
        ''')
        self.stamp(7)
        a('s_barrier                              ; B4 : P, l, V ready')
        self.stamp(8)
        for u in range(4):
            a(f'ds_read_b128 v[{32+4*u}:{35+4*u}], v31 offset:{u*64}')
            a(f'ds_read_b64_tr_b16 v[{48+4*u}:{49+4*u}], v30 offset:{u*8192}')
            a(f'ds_read_b64_tr_b16 v[{50+4*u}:{51+4*u}], v30 offset:{u*8192+4096}')
        for u in range(4):
            a(f's_waitcnt lgkmcnt({3*(3-u)})') if not self.diag else (a('s_waitcnt lgkmcnt(0)') if u == 0 else None)
            c = '0' if u == 0 else 'v[20:23]'
            a(f'v_mfma_f32_16x16x32_bf16 v[20:23], v[{32+4*u}:{35+4*u}], v[{48+4*u}:{51+4*u}], {c}')
        a(f'''
        v_cmp_eq_u32 s[44:45], 1, v4
        v_cmp_eq_u32 s[46:47], 2, v4
        v_cmp_eq_u32 vcc, 3, v4
        v_lshlrev_b32 v24, 8, v4               ; head*256
        v_lshlrev_b32 v25, 1, v3
        v_add_u32 v24, v24, v25
        s_lshl_b32 s7, s3, 5
        s_lshl_b32 s50, s2, 0
        s_lshl_b32 s50, s4, 5
        s_add_u32 s50, s50, s5
        s_lshl_b32 s50, s50, 11                ; (g*32+s)*2048
        s_add_u32 s51, s50, {WS_OB}
        s_add_u32 s7, s7, s51
        v_cndmask_b32 v20, v20, v21, s[44:45]
        v_cndmask_b32 v20, v20, v22, s[46:47]
        v_cndmask_b32 v20, v20, v23, vcc
        s_nop 1
        v_mov_b32_dpp v21, v20 quad_perm:[1,0,3,2] row_mask:0xf bank_mask:0xf
        s_nop 0
        v_cvt_pk_bf16_f32 v20, v20, v21
        v_min_u32 v20, -2, v20
        s_mov_b32 exec_lo, 0x55555555
        s_mov_b32 exec_hi, 0x55555555
        buffer_store_dword v20, v24, s[28:31], s7 offen sc1
        s_mov_b64 exec, -1
        ''')
        self.stamp(9)
        a('''
        s_cmp_lt_u32 s5, 16
        s_cbranch_scc1 L_wo
        s_cmp_lt_u32 s5, 30
        s_cbranch_scc1 L_mlp
        s_branch L_fin
        ''')
        self.role_wo()
        self.role_mlp()
        self.role_fin()
        self.comm()
        a('L_exit:')
        a('s_endpgm')
        return wrap(a.text(), 256, 576, LDS_BYTES, 128, sgpr=100)

    def tag_insert(self, regs, tmp_s):
        a = self.a
        for k, r in enumerate(regs):
            a(f's_bfe_u32 {tmp_s}, s42, {(8 << 16) | (8 * k)}')
            a(f'v_and_b32 {r}, 0xffffff00, {r}')
            a(f'v_or_b32 {r}, {tmp_s}, {r}')
    def tag_check(self, granules, t0, t1, first=True):
        a = self.a
        for i, b in enumerate(granules):
            a(f'v_perm_b32 {t0}, v{b+1}, v{b}, s53')
            a(f'v_perm_b32 {t1}, v{b+3}, v{b+2}, s54')
            a(f'v_or_b32 {t0}, {t0}, {t1}')
            if i == 0:
                a(f'v_cmp_ne_u32 vcc, s42, {t0}')
            else:
                a(f'v_cmp_ne_u32 s[44:45], s42, {t0}')
                a('s_nop 0')
                a('s_or_b64 vcc, vcc, s[44:45]')
    def tag_consts(self):
        self.a('s_mov_b32 s53, 0x0c0c0400')
        self.a('s_mov_b32 s54, 0x04000c0c')

    def role_wo(self):
        a = self.a
        a('L_wo:')
        a(f'''
        v_and_b32 v8, 31, v0
        v_lshrrev_b32 v9, 5, v0
        v_lshlrev_b32 v10, 11, v8              ; c*2048
        v_lshl_or_b32 v11, v9, 4, v10          ; + kh*16
        s_lshl_b32 s7, s4, 16                  ; g*32*2048
        s_add_u32 s7, s7, {WS_OB}
        s_lshr_b32 s44, s3, 1
        s_lshl_b32 s45, s44, 8                 ; h*256
        s_and_b32 s46, s3, 1
        s_lshl_b32 s46, s46, 7                 ; dhalf*128
        s_add_u32 s45, s45, s46
        s_add_u32 s55, s7, s45
        s_lshl_b32 s44, s44, 3                 ; h*8
        s_add_u32 s56, s7, s44
        s_add_u32 s56, s56, 1024
        v_bfe_u32 v12, v0, 4, 1                ; colhalf
        v_bfe_u32 v13, v0, 2, 2                ; r
        v_and_b32 v14, 3, v0                   ; c
        v_lshlrev_b32 v15, 9, v9
        v_lshl_or_b32 v15, v13, 6, v15         ; + r*64
        v_lshl_or_b32 v15, v12, 5, v15         ; + colhalf*32
        v_lshl_or_b32 v15, v14, 3, v15         ; + c*8
        v_add_u32 v15, s39, v15
        s_waitcnt vmcnt(0)
        ''')
        for st in range(4):
            a(f'ds_read_b64_tr_b16 v[{48+4*st}:{49+4*st}], v15 offset:{st*1024}')
            a(f'ds_read_b64_tr_b16 v[{50+4*st}:{51+4*st}], v15 offset:{st*1024+256}')
        self.stamp(10)
        self.poll_head('L_wo_p1')
        a(f'''
        buffer_load_dwordx2 v[16:17], v10, s[28:31], s56 offen sc1
        buffer_load_dwordx4 v[32:35], v11, s[28:31], s55 offen sc1
        buffer_load_dwordx4 v[36:39], v11, s[28:31], s55 offen offset:32 sc1
        buffer_load_dwordx4 v[40:43], v11, s[28:31], s55 offen offset:64 sc1
        buffer_load_dwordx4 v[44:47], v11, s[28:31], s55 offen offset:96 sc1
        s_waitcnt vmcnt(0)
        v_max3_u32 v18, v16, v17, v32
        v_max3_u32 v19, v33, v34, v35
        v_max3_u32 v18, v18, v36, v37
        v_max3_u32 v19, v19, v38, v39
        v_max3_u32 v18, v18, v40, v41
        v_max3_u32 v19, v19, v42, v43
        v_max3_u32 v18, v18, v44, v45
        v_max3_u32 v19, v19, v46, v47
        v_max_u32 v18, v18, v19
        v_cmp_eq_u32 vcc, -1, v18
        ''')
        self.poll_tail('L_wo_p1')
        self.stamp(11)
        a(f'''
        s_waitcnt lgkmcnt(0)
        v_mfma_f32_32x32x16_bf16 v[64:79], v[32:35], v[48:51], 0
        v_mfma_f32_32x32x16_bf16 v[64:79], v[36:39], v[52:55], v[64:79]
        v_mfma_f32_32x32x16_bf16 v[64:79], v[40:43], v[56:59], v[64:79]
        v_mfma_f32_32x32x16_bf16 v[64:79], v[44:47], v[60:63], v[64:79]
        v_mov_b32 v18, v16
        ''')
        for r in (8, 4, 2, 1):
            self.nop(2)
            a(f'v_max_f32_dpp v18, v18, v18 row_ror:{r} row_mask:0xf bank_mask:0xf')
        a('v_mov_b32 v19, v18')
        self.nop(2)
        a('v_permlane16_swap_b32 v18, v19')
        self.nop(1)
        a(f'''
        v_max_f32 v18, v18, v19
        v_sub_f32 v16, v16, v18
        v_mul_f32 v16, {LOG2E}, v16
        v_exp_f32 v16, v16
        s_nop 0
        v_mul_f32 v17, v16, v17
        ''')
        for r in (8, 4, 2, 1):
            self.nop(2)
            a(f'v_add_f32_dpp v17, v17, v17 row_ror:{r} row_mask:0xf bank_mask:0xf')
        a('v_mov_b32 v19, v17')
        self.nop(2)
        a('v_permlane16_swap_b32 v17, v19')
        self.nop(1)
        a(f'''
        v_add_f32 v17, v17, v19
        v_rcp_f32 v17, v17
        s_nop 0
        v_mul_f32 v16, v16, v17
        s_lshl_b32 s7, s3, 7
        s_add_u32 s7, s7, {L_W}
        v_lshlrev_b32 v18, 2, v8
        v_add_u32 v18, s7, v18
        v_lshlrev_b32 v19, 4, v9
        v_add_u32 v19, s7, v19                 ; L_W + w*128 + half*16
        s_mov_b32 exec_hi, 0
        ds_write_b32 v18, v16
        s_mov_b64 exec, -1
        s_waitcnt lgkmcnt(0)
        ds_read_b128 v[80:83], v19
        ds_read_b128 v[84:87], v19 offset:32
        ds_read_b128 v[88:91], v19 offset:64
        ds_read_b128 v[92:95], v19 offset:96
        s_waitcnt lgkmcnt(0)
        v_mul_f32 v20, v64, v80
        v_mul_f32 v21, v65, v81
        v_mul_f32 v22, v66, v82
        v_mul_f32 v23, v67, v83
        ''')
        for r in range(4, 16):
            a(f'v_fmac_f32 v{20+(r&3)}, v{64+r}, v{80+r}')
        a('''
        v_add_f32 v20, v20, v21
        v_add_f32 v22, v22, v23
        v_add_f32 v20, v20, v22
        v_mov_b32 v21, v20
        s_nop 1
        v_permlane32_swap_b32 v20, v21
        s_nop 0
        v_add_f32 v20, v20, v21
        ''')
        a(f'''
        s_lshl_b32 s7, s3, 7
        s_add_u32 s7, s7, {L_OP}
        v_lshlrev_b32 v18, 2, v8
        v_add_u32 v18, s7, v18
        s_mov_b32 exec_hi, 0
        ds_write_b32 v18, v20
        s_mov_b64 exec, -1
        s_waitcnt lgkmcnt(0)
        s_barrier
        s_cmp_lg_u32 s3, 0
        s_cbranch_scc1 L_wo_end
        v_and_b32 v18, 7, v0
        v_lshlrev_b32 v18, 4, v18              ; quad*16
        v_add_u32 v19, {L_OP}, v18
        ''')
        for w in range(8):
            a(f'ds_read_b128 v[{32+4*w}:{35+4*w}], v19 offset:{w*128}')
        a(f'''
        v_lshrrev_b32 v20, 3, v0
        v_lshlrev_b32 v20, 14, v20
        v_add_u32 v20, v20, v18
        s_lshl_b32 s7, s4, 11
        s_lshl_b32 s44, s5, 7
        s_add_u32 s7, s7, s44
        s_add_u32 s55, s7, {WS_H3}
        s_waitcnt lgkmcnt(0)
        ''')
        for k in range(4):
            a(f'v_add_f32 v{32+k}, v{32+k}, v{36+k}')
            a(f'v_add_f32 v{40+k}, v{40+k}, v{44+k}')
            a(f'v_add_f32 v{48+k}, v{48+k}, v{52+k}')
            a(f'v_add_f32 v{56+k}, v{56+k}, v{60+k}')
        for k in range(4):
            a(f'v_add_f32 v{32+k}, v{32+k}, v{40+k}')
            a(f'v_add_f32 v{48+k}, v{48+k}, v{56+k}')
        for k in range(4):
            a(f'v_add_f32 v{32+k}, v{32+k}, v{48+k}')
        self.tag_insert(['v32', 'v33', 'v34', 'v35'], 's7')
        a('buffer_store_dwordx4 v[32:35], v20, s[28:31], s55 offen sc1')
        self.stamp(12)
        a('L_wo_end:')
        self.stamp_flush('wo')
        a('s_endpgm')

    def gather_h(self, lab, colbase_sgpr):
        a = self.a
        a(f'''
        v_lshlrev_b32 v8, 11, v4               ; pq*2048
        v_lshl_or_b32 v8, v3, 4, v8            ; + cq*16
        s_lshl_b32 s7, s4, 14                  ; x*8*2048
        s_add_u32 s7, s7, {WS_H3}
        s_add_u32 s55, s7, {colbase_sgpr}
        s_add_u32 s56, s55, 8192
        ''')
        self.tag_consts()
        self.stamp(10)
        self.poll_head(lab)
        a(f'''
        buffer_load_dwordx4 v[32:35], v8, s[28:31], s55 offen sc1
        buffer_load_dwordx4 v[36:39], v8, s[28:31], s56 offen sc1
        s_waitcnt vmcnt(0)
        ''')
        self.tag_check([32, 36], 'v40', 'v41')
        self.poll_tail(lab)
        self.stamp(11)
        for k in range(8):
            a(f'v_and_b32 v{32+k}, 0xffffff00, v{32+k}')
        for k in range(4):
            a(f'v_add_f32 v{20+k}, v{32+k}, v{36+k}')
        for k in range(4):
            a(f'v_mov_b32 v{32+k}, v{20+k}')
        self.nop(1)
        for k in range(4):
            a(f'v_permlane16_swap_b32 v{20+k}, v{32+k}')
        self.nop(1)
        for k in range(4):
            a(f'v_add_f32 v{20+k}, v{20+k}, v{32+k}')
        for k in range(4):
            a(f'v_mov_b32 v{32+k}, v{20+k}')
        self.nop(1)
        for k in range(4):
            a(f'v_permlane32_swap_b32 v{20+k}, v{32+k}')
        self.nop(1)
        for k in range(4):
            a(f'v_add_f32 v{20+k}, v{20+k}, v{32+k}')
        a('''
        v_cvt_pk_bf16_f32 v24, v20, v21
        v_cvt_pk_bf16_f32 v25, v22, v23
        v_lshlrev_b32 v20, 16, v24
        v_and_b32 v21, 0xffff0000, v24
        v_lshlrev_b32 v22, 16, v25
        v_and_b32 v23, 0xffff0000, v25
        v_lshlrev_b32 v32, 16, v18
        v_and_b32 v33, 0xffff0000, v18
        v_lshlrev_b32 v34, 16, v19
        v_and_b32 v35, 0xffff0000, v19
        v_add_f32 v20, v20, v32
        v_add_f32 v21, v21, v33
        v_add_f32 v22, v22, v34
        v_add_f32 v23, v23, v35
        v_cvt_pk_bf16_f32 v24, v20, v21
        v_cvt_pk_bf16_f32 v25, v22, v23
        v_lshlrev_b32 v20, 16, v24
        v_and_b32 v21, 0xffff0000, v24
        v_lshlrev_b32 v22, 16, v25
        v_and_b32 v23, 0xffff0000, v25
        ''')

    def role_mlp(self):
        a = self.a; polw = self.o['polw']
        a('L_mlp:')
        a(f'''
        s_mul_i32 s57, s4, 14
        s_add_u32 s57, s57, s5
        s_sub_u32 s57, s57, 16                 ; p
        v_lshrrev_b32 v14, 1, v0
        s_mov_b32 s7, 3584
        v_mul_lo_u32 v14, v14, s7
        v_and_b32 v15, 1, v0
        v_lshl_or_b32 v15, v15, 4, 0
        v_add_u32 v14, v14, v15
        s_mul_i32 s44, s3, {64*3584}
        s_lshl_b32 s45, s57, 5
        s_add_u32 s44, s44, s45
        s_mov_b32 m0, s39
        s_add_u32 s45, s44, {32*3584-1024}
        buffer_load_dwordx4 v14, s[20:23], s44 offen {polw} lds
        buffer_load_dwordx4 v14, s[20:23], s45 offen offset:1024 {polw} lds
        v_lshlrev_b32 v15, 12, v4
        v_lshl_or_b32 v15, v3, 3, v15          ; + j*8
        s_lshl_b32 s44, s57, 14                ; 16p*1024
        s_lshl_b32 s45, s3, 7                  ; 64w*2
        s_add_u32 s44, s44, s45
        buffer_load_dwordx2 v[48:49], v15, s[24:27], s44 offen {polw}
        buffer_load_dwordx2 v[50:51], v15, s[24:27], s44 offen offset:1024 {polw}
        buffer_load_dwordx2 v[52:53], v15, s[24:27], s44 offen offset:2048 {polw}
        buffer_load_dwordx2 v[54:55], v15, s[24:27], s44 offen offset:3072 {polw}
        v_lshlrev_b32 v16, 3, v3
        s_lshl_b32 s45, s3, 7
        v_add_u32 v16, s45, v16
        global_load_dwordx2 v[18:19], v16, s[32:33]
        v_lshlrev_b32 v12, 3, v0
        v_add_u32 v12, s39, v12
        s_waitcnt vmcnt(5)
        ''')
        self.stamp(13)
        a(f'''
        ds_read_b64_tr_b16 v[56:57], v12
        ds_read_b64_tr_b16 v[58:59], v12 offset:512
        ds_read_b64_tr_b16 v[60:61], v12 offset:1024
        ds_read_b64_tr_b16 v[62:63], v12 offset:1536
        v_mov_b32 v64, 0x3f803f80
        v_mov_b32 v65, 0x3f803f80
        v_mov_b32 v66, 0x3f803f80
        v_mov_b32 v67, 0x3f803f80
        s_waitcnt lgkmcnt(0)
        v_mfma_f32_16x16x32_bf16 v[68:71], v[64:67], v[56:59], 0
        v_mfma_f32_16x16x32_bf16 v[68:71], v[64:67], v[60:63], v[68:71]
        s_lshl_b32 s7, s3, 6
        s_add_u32 s7, s7, {L_CS}
        v_lshlrev_b32 v13, 2, v0
        v_add_u32 v13, s7, v13
        s_mov_b64 exec, 0xffff
        s_nop 4
        ds_write_b32 v13, v68
        s_mov_b64 exec, -1
        s_waitcnt vmcnt(0)
        ''')
        self.stamp(14)
        a(f'''
        s_mov_b32 s44, 0x05040100
        s_mov_b32 s45, 0x07060302
        v_perm_b32 v72, v50, v48, s44
        v_perm_b32 v73, v54, v52, s44
        v_perm_b32 v74, v50, v48, s45          ; t=1
        v_perm_b32 v75, v54, v52, s45
        v_perm_b32 v76, v51, v49, s44          ; t=2
        v_perm_b32 v77, v55, v53, s44
        v_perm_b32 v78, v51, v49, s45          ; t=3
        v_perm_b32 v79, v55, v53, s45
        s_waitcnt lgkmcnt(0)
        s_barrier
        ''')
        self.stamp(15)
        a(f'''
        v_lshlrev_b32 v13, 4, v4
        v_add_u32 v13, {L_CS}, v13
        ''')
        for w in range(8):
            a(f'ds_read_b128 v[{80+4*w}:{83+4*w}], v13 offset:{w*64}')
        a('s_waitcnt lgkmcnt(0)')
        for k in range(4):
            a(f'v_add_f32 v{80+k}, v{80+k}, v{84+k}')
            a(f'v_add_f32 v{88+k}, v{88+k}, v{92+k}')
            a(f'v_add_f32 v{96+k}, v{96+k}, v{100+k}')
            a(f'v_add_f32 v{104+k}, v{104+k}, v{108+k}')
        for k in range(4):
            a(f'v_add_f32 v{80+k}, v{80+k}, v{88+k}')
            a(f'v_add_f32 v{96+k}, v{96+k}, v{104+k}')
        for k in range(4):
            a(f'v_add_f32 v{80+k}, v{80+k}, v{96+k}')
        a('s_lshl_b32 s58, s3, 8')
        self.gather_h('L_mlp_p', 's58')
        a(f'''
        v_add_f32 v26, v20, v21
        v_add_f32 v27, v22, v23
        v_add_f32 v26, v26, v27
        v_mul_f32 v27, v20, v20
        v_fmac_f32 v27, v21, v21
        v_fmac_f32 v27, v22, v22
        v_fmac_f32 v27, v23, v23
        s_lshl_b32 s7, s3, 7
        s_add_u32 s7, s7, {L_LN}
        v_lshlrev_b32 v28, 3, v3
        v_add_u32 v28, s7, v28
        s_mov_b64 exec, 0xffff
        ds_write_b64 v28, v[24:25]
        s_mov_b64 exec, -1
        v_lshlrev_b32 v29, 3, v4
        v_add_u32 v29, s7, v29                 ; + kq*8
        ''')
        for r in (8, 4, 2, 1):
            a(f'v_add_f32_dpp v26, v26, v26 row_ror:{r} row_mask:0xf bank_mask:0xf')
            a(f'v_add_f32_dpp v27, v27, v27 row_ror:{r} row_mask:0xf bank_mask:0xf')
            self.nop(1)
        a(f'''
        s_waitcnt lgkmcnt(0)
        ds_read2_b64 v[32:35], v29 offset0:0 offset1:4
        ds_read2_b64 v[36:39], v29 offset0:8 offset1:12
        s_lshl_b32 s7, s3, 3
        s_add_u32 s7, s7, {L_ST}
        v_mov_b32 v30, s7
        s_mov_b64 exec, 1
        ds_write_b64 v30, v[26:27]
        s_mov_b64 exec, -1
        s_waitcnt lgkmcnt(0)
        v_mfma_f32_16x16x32_bf16 v[40:43], v[32:35], v[56:59], 0
        v_mfma_f32_16x16x32_bf16 v[40:43], v[36:39], v[60:63], v[40:43]
        s_lshl_b32 s7, s3, 6
        s_add_u32 s7, s7, {L_QP}
        v_lshlrev_b32 v13, 2, v0
        v_add_u32 v13, s7, v13
        s_mov_b64 exec, 0xffff
        s_nop 4
        ds_write_b32 v13, v40
        s_mov_b64 exec, -1
        s_waitcnt lgkmcnt(0)
        s_barrier
        v_lshlrev_b32 v13, 4, v4
        v_add_u32 v13, {L_QP}, v13
        v_mov_b32 v14, {L_ST}
        ''')
        for w in range(8):
            a(f'ds_read_b128 v[{84+4*w}:{87+4*w}], v13 offset:{w*64}')
        for i in range(4):
            a(f'ds_read_b128 v[{32+4*i}:{35+4*i}], v14 offset:{i*16}')
        a('s_waitcnt lgkmcnt(0)')
        a('''
        v_add_f32 v32, v32, v34
        v_add_f32 v33, v33, v35
        v_add_f32 v36, v36, v38
        v_add_f32 v37, v37, v39
        v_add_f32 v40, v40, v42
        v_add_f32 v41, v41, v43
        v_add_f32 v44, v44, v46
        v_add_f32 v45, v45, v47
        v_add_f32 v32, v32, v36
        v_add_f32 v33, v33, v37
        v_add_f32 v40, v40, v44
        v_add_f32 v41, v41, v45
        v_add_f32 v32, v32, v40
        v_add_f32 v33, v33, v41
        v_mul_f32 v32, 0x3b000000, v32         ; mean
        v_mul_f32 v33, 0x3b000000, v33         ; E[h^2]
        v_fma_f32 v33, -v32, v32, v33          ; var
        v_max_f32 v33, 0, v33
        v_add_f32 v33, 0x3727c5ac, v33
        v_rsq_f32 v33, v33
        ''')
        for k in range(4):
            a(f'v_add_f32 v{84+k}, v{84+k}, v{88+k}')
            a(f'v_add_f32 v{92+k}, v{92+k}, v{96+k}')
            a(f'v_add_f32 v{100+k}, v{100+k}, v{104+k}')
            a(f'v_add_f32 v{108+k}, v{108+k}, v{112+k}')
        for k in range(4):
            a(f'v_add_f32 v{84+k}, v{84+k}, v{92+k}')
            a(f'v_add_f32 v{100+k}, v{100+k}, v{108+k}')
        for k in range(4):
            a(f'v_add_f32 v{84+k}, v{84+k}, v{100+k}')
        for k in range(4):
            a(f'v_fma_f32 v{84+k}, -v32, v{80+k}, v{84+k}')
        for k in range(4):
            a(f'v_mul_f32 v{84+k}, v{84+k}, v33')
        a('''
        v_cvt_pk_bf16_f32 v34, v84, v85
        v_cvt_pk_bf16_f32 v35, v86, v87
        v_lshlrev_b32 v84, 16, v34
        v_and_b32 v85, 0xffff0000, v34
        v_lshlrev_b32 v86, 16, v35
        v_and_b32 v87, 0xffff0000, v35
        ''')
        for k in range(4):
            a(f'v_mul_f32 v{88+k}, 0xbfb8aa3b, v{84+k}')
        for k in range(4):
            a(f'v_exp_f32 v{88+k}, v{88+k}')
        a('s_nop 0')
        for k in range(4):
            a(f'v_add_f32 v{88+k}, 1.0, v{88+k}')
        for k in range(4):
            a(f'v_rcp_f32 v{88+k}, v{88+k}')
        a('s_nop 0')
        for k in range(4):
            a(f'v_mul_f32 v{84+k}, v{84+k}, v{88+k}')
        a(f'''
        v_cvt_pk_bf16_f32 v34, v84, v85
        v_cvt_pk_bf16_f32 v35, v86, v87
        s_nop 1
        v_mfma_f32_16x16x16_bf16 v[36:39], v[34:35], v[72:73], 0
        v_mfma_f32_16x16x16_bf16 v[40:43], v[34:35], v[74:75], 0
        v_mfma_f32_16x16x16_bf16 v[44:47], v[34:35], v[76:77], 0
        v_mfma_f32_16x16x16_bf16 v[48:51], v[34:35], v[78:79], 0
        v_lshlrev_b32 v13, 4, v3               ; j*16
        s_lshl_b32 s7, s57, 11
        s_lshl_b32 s44, s3, 8
        s_add_u32 s7, s7, s44
        s_add_u32 s55, s7, {WS_H4}
        s_nop 4
        v_mov_b32 v52, v36
        v_mov_b32 v53, v40
        v_mov_b32 v54, v44
        v_mov_b32 v55, v48
        ''')
        self.tag_insert(['v52', 'v53', 'v54', 'v55'], 's7')
        a('''
        s_mov_b64 exec, 0xffff
        buffer_store_dwordx4 v[52:55], v13, s[28:31], s55 offen sc1
        s_mov_b64 exec, -1
        ''')
        self.stamp(12)
        self.stamp_flush('mlp')
        a('s_endpgm')

    def role_fin(self):
        a = self.a
        a('L_fin:')
        a(f'''
        s_lshl_b32 s57, s4, 1
        s_add_u32 s57, s57, s5
        s_sub_u32 s57, s57, 30                 ; f
        v_and_b32 v16, 7, v3
        v_lshlrev_b32 v16, 3, v16
        s_lshl_b32 s45, s57, 6
        v_add_u32 v16, s45, v16
        global_load_dwordx2 v[18:19], v16, s[32:33]
        s_waitcnt vmcnt(0)
        s_cmp_lg_u32 s3, 0
        s_cbranch_scc1 L_fin_h4
        ''')
        a('v_mov_b32 v5, v3')
        a('v_and_b32 v3, 7, v3')
        a('s_lshl_b32 s58, s57, 7')
        self.gather_h('L_fin_p', 's58')
        a('v_mov_b32 v3, v5')
        a('L_fin_h4:')
        self.tag_consts()
        a(f'''
        v_and_b32 v8, 7, v0
        v_lshrrev_b32 v9, 3, v0
        v_lshlrev_b32 v10, 11, v9
        v_lshl_or_b32 v10, v8, 4, v10
        s_lshl_b32 s7, s3, 14                  ; w*8*2048
        s_lshl_b32 s44, s57, 7                 ; f*128
        s_add_u32 s7, s7, s44
        s_add_u32 s55, s7, {WS_H4}
        s_add_u32 s56, s55, {64*2048}
        s_cmp_lt_u32 s3, 6
        s_cselect_b32 s56, s56, s55
        s_cselect_b32 s59, 1.0, 0
        ''')
        self.poll_head('L_fin_p4')
        a('''
        buffer_load_dwordx4 v[32:35], v10, s[28:31], s55 offen sc1
        buffer_load_dwordx4 v[36:39], v10, s[28:31], s56 offen sc1
        s_waitcnt vmcnt(0)
        ''')
        self.tag_check([32, 36], 'v40', 'v41')
        self.poll_tail('L_fin_p4')
        self.stamp(12)
        for k in range(8):
            a(f'v_and_b32 v{32+k}, 0xffffff00, v{32+k}')
        for k in range(4):
            a(f'v_fma_f32 v{32+k}, v{36+k}, s59, v{32+k}')
        self.nop(1)
        for k in range(4):
            a(f'v_add_f32_dpp v{32+k}, v{32+k}, v{32+k} row_ror:8 row_mask:0xf bank_mask:0xf')
        for k in range(4):
            a(f'v_mov_b32 v{36+k}, v{32+k}')
        self.nop(1)
        for k in range(4):
            a(f'v_permlane16_swap_b32 v{32+k}, v{36+k}')
        self.nop(1)
        for k in range(4):
            a(f'v_add_f32 v{32+k}, v{32+k}, v{36+k}')
        for k in range(4):
            a(f'v_mov_b32 v{36+k}, v{32+k}')
        self.nop(1)
        for k in range(4):
            a(f'v_permlane32_swap_b32 v{32+k}, v{36+k}')
        self.nop(1)
        for k in range(4):
            a(f'v_add_f32 v{32+k}, v{32+k}, v{36+k}')
        a(f'''
        s_lshl_b32 s7, s3, 7
        s_add_u32 s7, s7, {L_OP}
        v_lshlrev_b32 v11, 4, v8
        v_add_u32 v12, s7, v11
        s_mov_b64 exec, 0xff
        ds_write_b128 v12, v[32:35]
        s_mov_b64 exec, -1
        s_waitcnt lgkmcnt(0)
        s_barrier
        s_cmp_lg_u32 s3, 0
        s_cbranch_scc1 L_fin_end
        v_add_u32 v12, {L_OP}, v11
        ''')
        for w in range(8):
            a(f'ds_read_b128 v[{32+4*w}:{35+4*w}], v12 offset:{w*128}')
        a('s_waitcnt lgkmcnt(0)')
        for k in range(4):
            a(f'v_add_f32 v{32+k}, v{32+k}, v{36+k}')
            a(f'v_add_f32 v{40+k}, v{40+k}, v{44+k}')
            a(f'v_add_f32 v{48+k}, v{48+k}, v{52+k}')
            a(f'v_add_f32 v{56+k}, v{56+k}, v{60+k}')
        for k in range(4):
            a(f'v_add_f32 v{32+k}, v{32+k}, v{40+k}')
            a(f'v_add_f32 v{48+k}, v{48+k}, v{56+k}')
        for k in range(4):
            a(f'v_add_f32 v{32+k}, v{32+k}, v{48+k}')
        a(f'''
        v_cvt_pk_bf16_f32 v36, v32, v33
        v_cvt_pk_bf16_f32 v37, v34, v35
        v_lshlrev_b32 v32, 16, v36
        v_and_b32 v33, 0xffff0000, v36
        v_lshlrev_b32 v34, 16, v37
        v_and_b32 v35, 0xffff0000, v37
        v_add_f32 v32, v32, v20
        v_add_f32 v33, v33, v21
        v_add_f32 v34, v34, v22
        v_add_f32 v35, v35, v23
        v_cvt_pk_bf16_f32 v36, v32, v33
        v_cvt_pk_bf16_f32 v37, v34, v35
        v_lshlrev_b32 v11, 3, v8
        s_lshl_b32 s7, s57, 6
        v_add_u32 v11, s7, v11
        s_waitcnt lgkmcnt(0)
        s_mov_b64 exec, 0xff
        global_store_dwordx2 v11, v[36:37], s[34:35]
        s_cmp_lg_u32 s57, 0
        s_cbranch_scc1 L_fin_end
        s_add_u32 s7, s43, 1
        v_mov_b32 v12, s7
        v_mov_b32 v13, 0
        s_mov_b64 exec, 1
        buffer_store_dword v12, v13, s[28:31], 0 offen sc1
        L_fin_end:
        s_mov_b64 exec, -1
        ''')
        self.stamp(13)
        self.stamp_flush('fin')
        a('s_endpgm')

    def comm(self):
        a = self.a
        a('L_comm:')
        a(f'''
        s_getreg_b32 s6, hwreg(HW_REG_XCC_ID, 0, 3)
        s_lshl_b32 s50, s4, 5
        s_add_u32 s50, s50, s5                 ; g*32+s
        s_lshl_b32 s51, s50, 11
        s_add_u32 s51, s51, {WS_OB}
        v_lshlrev_b32 v2, 4, v0                ; lane*16
        v_mov_b32 v8, -1
        v_mov_b32 v9, -1
        v_mov_b32 v10, -1
        v_mov_b32 v11, -1
        s_waitcnt lgkmcnt(0)
        s_load_dword s43, s[28:29], 0x0
        buffer_store_dwordx4 v[8:11], v2, s[28:31], s51 offen sc1
        s_mov_b64 exec, 3
        buffer_store_dwordx4 v[8:11], v2, s[28:31], s51 offen offset:1024 sc1
        s_mov_b64 exec, -1
        s_waitcnt lgkmcnt(0)
        s_mul_i32 s42, s43, 0x9e3779b1
        s_add_u32 s42, s42, 0x7f4a7c15
        s_and_b32 s40, s42, 0xfff8             ; tagA
        s_lshr_b32 s41, s42, 16
        s_and_b32 s41, s41, 0xfff8             ; tagB
        ; addresses
        v_and_b32 v12, 3, v0                   ; gq
        v_bfe_u32 v13, v0, 2, 3                ; w' = (lane>>2)&7
        v_lshlrev_b32 v14, 6, v13
        v_lshl_or_b32 v14, v12, 4, v14
        v_add_u32 v14, {L_QP}, v14             ; q partial read address
        v_lshrrev_b32 v15, 2, v0
        v_lshlrev_b32 v15, 7, v15
        v_lshl_or_b32 v15, v12, 4, v15
        s_lshl_b32 s55, s4, 12
        s_add_u32 s55, s55, {WS_Q}
        s_add_u32 s56, s55, 2048
        s_lshl_b32 s7, s5, 7
        s_add_u32 s57, s55, s7
        s_or_b32 s44, s40, s6
        s_or_b32 s45, s41, s6
        v_mov_b32 v16, s44
        v_mov_b32 v17, s45
        v_mov_b32 v18, s40
        v_mov_b32 v19, s41
        s_waitcnt vmcnt(0)
        ''')
        self.stamp(3)
        a(f'''
        s_barrier                              ; B1
        ds_read_b128 v[20:23], v14
        s_waitcnt lgkmcnt(0)
        ''')
        self.stamp(4)
        for r in (4, 8):
            self.nop(1)
            for k in range(4):
                a(f'v_add_f32_dpp v{20+k}, v{20+k}, v{20+k} row_ror:{r} row_mask:0xf bank_mask:0xf')
        for k in range(4):
            a(f'v_mov_b32 v{24+k}, v{20+k}')
        self.nop(1)
        for k in range(4):
            a(f'v_permlane16_swap_b32 v{20+k}, v{24+k}')
        self.nop(1)
        for k in range(4):
            a(f'v_add_f32 v{20+k}, v{20+k}, v{24+k}')
        a(f'''
        v_cvt_pk_bf16_f32 v24, v20, v21
        v_cvt_pk_bf16_f32 v25, v22, v23
        s_mov_b32 s7, 0xffff0000
        v_lshl_or_b32 v20, v24, 16, v16
        v_and_or_b32 v21, v24, s7, v17
        v_lshl_or_b32 v22, v25, 16, v16
        v_and_or_b32 v23, v25, s7, v17
        v_lshlrev_b32 v26, 4, v12
        s_mov_b64 exec, 0xf
        buffer_store_dwordx4 v[20:23], v26, s[28:31], s57 offen sc1
        s_mov_b64 exec, -1
        s_setprio 3
        ''')
        self.stamp(5)
        self.poll_head('L_q_poll')
        a(f'''
        buffer_load_dwordx4 v[28:31], v15, s[28:31], s55 offen sc1
        buffer_load_dwordx4 v[32:35], v15, s[28:31], s56 offen sc1
        s_waitcnt vmcnt(0)
        v_xor_b32 v36, v28, v18
        v_xor_b32 v37, v29, v19
        v_xor_b32 v38, v30, v18
        v_xor_b32 v39, v31, v19
        v_or3_b32 v36, v36, v37, v38
        v_xor_b32 v37, v32, v18
        v_xor_b32 v38, v33, v19
        v_or3_b32 v36, v36, v39, v37
        v_xor_b32 v39, v34, v18
        v_xor_b32 v37, v35, v19
        v_or3_b32 v36, v36, v38, v39
        v_or_b32 v36, v36, v37
        v_and_b32 v36, 0xfff8, v36
        v_cmp_ne_u32 vcc, 0, v36
        ''')
        self.poll_tail('L_q_poll')
        self.stamp(6)
        a(f'''
        s_mov_b32 s7, 0x07060302
        v_perm_b32 v36, v29, v28, s7
        v_perm_b32 v37, v31, v30, s7
        v_perm_b32 v38, v33, v32, s7
        v_perm_b32 v39, v35, v34, s7
        v_lshlrev_b32 v40, 3, v0
        v_add_u32 v40, {L_Q}, v40
        ds_write_b64 v40, v[36:37]
        ds_write_b64 v40, v[38:39] offset:512
        s_waitcnt lgkmcnt(0)
        s_barrier                              ; B2
        s_barrier                              ; B3
        s_barrier                              ; B4
        v_and_b32 v12, 3, v0
        v_lshlrev_b32 v13, 5, v12
        v_add_u32 v13, {L_M}, v13
        ds_read_b128 v[20:23], v13
        ds_read_b128 v[24:27], v13 offset:16
        ds_read_b128 v[28:31], v13 offset:{L_L-L_M}
        ds_read_b128 v[32:35], v13 offset:{L_L-L_M+16}
        v_lshlrev_b32 v14, 3, v12
        s_waitcnt lgkmcnt(0)
        v_max3_f32 v20, v20, v21, v22
        v_max3_f32 v24, v24, v25, v26
        v_max3_f32 v20, v20, v23, v27
        v_max_f32 v20, v20, v24
        v_add_f32 v28, v28, v29
        v_add_f32 v30, v30, v31
        v_add_f32 v32, v32, v33
        v_add_f32 v34, v34, v35
        v_add_f32 v28, v28, v30
        v_add_f32 v32, v32, v34
        v_add_f32 v21, v28, v32
        v_min_u32 v20, -2, v20
        v_min_u32 v21, -2, v21
        s_mov_b64 exec, 0xf
        buffer_store_dwordx2 v[20:21], v14, s[28:31], s51 offen offset:1024 sc1
        s_mov_b64 exec, -1
        ''')
        self.stamp(9)
        self.stamp_flush('comm')
        a('s_endpgm')

if __name__ == "__main__":
    import argparse
    ap = argparse.ArgumentParser()
    ap.add_argument('-o', default='k.s')
    ap.add_argument('--diag', action='store_true')
    ap.add_argument('--opt', action='append', default=[])
    args = ap.parse_args()
    opts = {}
    for kv in args.opt:
        k, v = kv.split('=', 1)
        try: v = int(v)
        except ValueError: pass
        opts[k] = v
    g = Gen(diag=args.diag, opts=opts)
    open(args.o, 'w').write(g.build())
```
